```python
import torch

def _softmax(x, axis=-1):
    return torch.softmax(x, dim=axis)
def _gelu(x):
    return torch.nn.functional.gelu(x, approximate="tanh")
def _silu(x):
    return torch.nn.functional.silu(x)
def _sigmoid(x):
    return torch.sigmoid(x)
def _layernorm(x, axis=-1, eps=1e-5):
    m = x.mean(dim=axis, keepdim=True)
    v = x.var(dim=axis, keepdim=True, unbiased=False)
    return (x - m) / torch.sqrt(v + eps)
def _scatter_add(tgt, idx, src, axis=0):
    return tgt.clone().index_add_(axis, idx, src)
def _segment_sum(src, seg, n):
    out = torch.zeros((n,) + src.shape[1:], dtype=src.dtype)
    return out.index_add_(0, seg, src)
def _pad(x, pw):
    flat = tuple(v for pair in reversed(pw) for v in pair)
    return torch.nn.functional.pad(x, flat)

kernel_name = 'sequential_preLN__grouped_kv_mqa__moe_arch_mod__prompt'

def setup_inputs():

    _w = (lambda a: (lambda t: t.to(torch.bfloat16) if t.is_floating_point() else t)(torch.as_tensor(a)))
    def _A_setup():
        B, S, D, H = 1, 2048, 448, 16
        Dh = D // H
        return {
            "x": _w((lambda *s: torch.randn(*s, dtype=torch.bfloat16) * 0.05)(B, S, D)),
            "wq": _w((lambda *s: torch.randn(*s, dtype=torch.bfloat16) * 0.05)(D, H * Dh)),
            "wk": _w((lambda *s: torch.randn(*s, dtype=torch.bfloat16) * 0.05)(D, Dh)),
            "wv": _w((lambda *s: torch.randn(*s, dtype=torch.bfloat16) * 0.05)(D, Dh)),
            "wo": _w((lambda *s: torch.randn(*s, dtype=torch.bfloat16) * 0.05)(H * Dh, D)),
        }
    _A_in = _A_setup()

    def _B_setup():
        B, S, D, F, C = 1, 2048, 448, 1792, 2
        return {
            "x": _w((lambda *s: torch.randn(*s, dtype=torch.bfloat16) * 0.05)(B, S, D)),
            "w_r": _w((lambda *s: torch.randn(*s, dtype=torch.bfloat16) * 0.05)(D)),
            "w_gate": _w((lambda *s: torch.randn(*s, dtype=torch.bfloat16) * 0.05)(D, F)),
            "w_up": _w((lambda *s: torch.randn(*s, dtype=torch.bfloat16) * 0.05)(D, F)),
            "w_down": _w((lambda *s: torch.randn(*s, dtype=torch.bfloat16) * 0.05)(F, D)),
        }
    _B_in = _B_setup()

    return {
        "A_x": _A_in["x"],
        "A_wq": _A_in["wq"],
        "A_wk": _A_in["wk"],
        "A_wv": _A_in["wv"],
        "A_wo": _A_in["wo"],
        "B_x": _B_in["x"],
        "B_w_r": _B_in["w_r"],
        "B_w_gate": _B_in["w_gate"],
        "B_w_up": _B_in["w_up"],
        "B_w_down": _B_in["w_down"],
    }

def reference(A_x, A_wq, A_wk, A_wv, A_wo, B_x, B_w_r, B_w_gate, B_w_up, B_w_down):
    def _A_ref(x, wq, wk, wv, wo):
        B, S, D = x.shape
        H = 16
        Dh = D // H
        q = (lambda x, *d: x.permute(*d))((x @ wq).reshape(B, S, H, Dh), 0, 2, 1, 3)
        k = x @ wk
        v = x @ wv
        scores = torch.einsum("bhqd,bkd->bhqk", q, k) * (Dh ** -0.5)
        p = _softmax(scores, axis=-1)
        o = torch.einsum("bhqk,bkd->bhqd", p, v)
        return (lambda x, *d: x.permute(*d))(o, 0, 2, 1, 3).reshape(B, S, H * Dh) @ wo

    def _B_ref(x, w_r, w_gate, w_up, w_down):
        B, S, D = x.shape
        C = 2
        r = x @ w_r
        idx = torch.argsort(-r, axis=-1)[:, :C]
        idx_e = (lambda x, n, axis: torch.repeat_interleave(x, n, dim=axis))(idx.reshape(B, C, 1), D, axis=2)
        x_sel = (lambda x, i, axis: torch.take_along_dim(x, i, dim=axis))(x, idx_e, axis=1)
        g = _silu(x_sel @ w_gate)
        u = x_sel @ w_up
        y = (g * u) @ w_down
        r_sel = _sigmoid((lambda x, i, axis: torch.take_along_dim(x, i, dim=axis))(r, idx, axis=1))
        y = y * r_sel.reshape(B, C, 1)
        b_off = (torch.arange(B) * S).reshape(B, 1)
        flat_idx = (idx + b_off).reshape(B * C)
        zero = (x * 0.0).reshape(B * S, D)
        upd = _scatter_add(zero, flat_idx, y.reshape(B * C, D), axis=0)
        return x + upd.reshape(B, S, D)

    x = A_x
    h = x + _A_ref(_layernorm(x, axis=-1), A_wq, A_wk, A_wv, A_wo)
    h2 = h + _B_ref(_layernorm(h, axis=-1), B_w_r, B_w_gate, B_w_up, B_w_down)
    return h2
```

```python
import re, copy

TRANS = ("v_exp_f32", "v_log_f32", "v_rcp_f32", "v_rsq_f32", "v_sqrt_f32", "v_sin_f32", "v_cos_f32",
         "v_exp_f16", "v_rcp_f16", "v_rcp_iflag_f32")
REG_RE = re.compile(r"^(-?\|?)([vas])(\d+)\|?$")
RNG_RE = re.compile(r"^(-?\|?)([vas])\[(\d+):(\d+)\]\|?$")


def regs_of(tok):
    tok = tok.strip()
    if tok in ("vcc",):
        return [("s", 106), ("s", 107)]
    if tok == "vcc_lo":
        return [("s", 106)]
    if tok == "vcc_hi":
        return [("s", 107)]
    if tok == "exec":
        return [("x", 0), ("x", 1)]
    if tok == "exec_lo":
        return [("x", 0)]
    if tok == "exec_hi":
        return [("x", 1)]
    if tok == "m0":
        return [("m", 0)]
    m = REG_RE.match(tok)
    if m:
        return [(m.group(2), int(m.group(3)))]
    m = RNG_RE.match(tok)
    if m:
        return [(m.group(2), i) for i in range(int(m.group(3)), int(m.group(4)) + 1)]
    return []


def split_ops(s):
    out, depth, cur = [], 0, ""
    for ch in s:
        if ch == "[":
            depth += 1
        elif ch == "]":
            depth -= 1
        if ch == "," and depth == 0:
            out.append(cur.strip())
            cur = ""
        else:
            cur += ch
    if cur.strip():
        out.append(cur.strip())
    return out


class State:
    def __init__(self):
        self.pos = 0
        self.wr = {}
        self.mfma_c = {}
        self.st_data = {}
        self.sgpr_valu = {}
        self.m0 = -100
        self.vmq = []
        self.lgq = []
        self.nid = 0


class Asm:
    def __init__(self):
        self.lines = []
        self.st = State()
        self.nnop = 0
        self.maybe = False

    def raw(self, s):
        self.lines.append(s)

    def label(self, name):
        self.lines.append(name + ":")

    def fork(self):
        return copy.deepcopy(self.st)

    def restore(self, st):
        self.st = copy.deepcopy(st)

    def cond_begin(self):
        self.maybe = True
        return (self.st.pos, list(self.st.vmq), list(self.st.lgq))

    def cond_end(self, tok):
        st = self.st
        pos, vmq, lgq = tok
        self.maybe = False
        old = {e[0] for e in lgq}
        assert all(e[0] in old for e in st.lgq), "cond block leaves LDS ops pending"
        st.lgq = lgq
        oldv = {e[0] for e in vmq}
        st.vmq = vmq + [e for e in st.vmq if e[0] not in oldv]
        st.pos = pos
        lim = pos - 1
        st.wr = {k: (min(x[0], lim),) + tuple(x[1:]) for k, x in st.wr.items()}
        st.mfma_c = {k: (min(x[0], lim), x[1]) for k, x in st.mfma_c.items()}
        st.st_data = {k: min(x, lim) for k, x in st.st_data.items()}
        st.sgpr_valu = {k: min(x, lim) for k, x in st.sgpr_valu.items()}
        st.m0 = min(st.m0, lim)

    def reset(self):
        self.st = State()

    def nop(self, n):
        while n > 0:
            k = min(n, 16)
            self.lines.append(f"s_nop {k-1}")
            self.st.pos += k
            self.nnop += 1
            n -= k

    def _vm_after(self, k):
        return sum(1 for e in self.st.vmq[k + 1:] if not e[2])

    def wait(self, vm=None, lgkm=None):
        st = self.st
        parts = []
        if vm is not None:
            vm = min(vm, 63)
            if len(st.vmq) > vm:
                cnt, k = 0, len(st.vmq)
                while k > 0 and cnt < vm:
                    k -= 1
                    if not st.vmq[k][2]:
                        cnt += 1
                if k > 0:
                    st.vmq = st.vmq[k:]
                    parts.append(f"vmcnt({vm})")
        if lgkm is not None:
            lgkm = min(lgkm, 15)
            if len(st.lgq) > lgkm:
                st.lgq = st.lgq[len(st.lgq) - lgkm:] if lgkm > 0 else []
                parts.append(f"lgkmcnt({lgkm})")
        if parts:
            self.lines.append("s_waitcnt " + " ".join(parts))
            st.pos += 1

    def wait_vm_id(self, i):
        st = self.st
        for k, e in enumerate(st.vmq):
            if e[0] == i:
                self.wait(vm=self._vm_after(k))
                return

    def wait_lg_id(self, i):
        st = self.st
        for k, e in enumerate(st.lgq):
            if e[0] == i:
                if any(x[2] for x in st.lgq):
                    self.wait(lgkm=0)
                else:
                    self.wait(lgkm=len(st.lgq) - k - 1)
                return

    def drain(self):
        self.wait(vm=0, lgkm=0)
        self.nop(16)

    def __call__(self, text):
        for ln in text.strip().split("\n"):
            ln = ln.split(";")[0].strip()
            if ln:
                r = self.emit(ln)
        return r

    def emit(self, ln):
        st = self.st
        parts = ln.split(None, 1)
        op = parts[0]
        rest = parts[1] if len(parts) > 1 else ""
        base = op
        for suf in ("_e32", "_e64", "_dpp", "_sdwa"):
            if base.endswith(suf):
                base = base[: -len(suf)]
        ops = split_ops(rest)
        mods = ""
        if ops:
            lp = ops[-1].split(None, 1)
            ops[-1] = lp[0]
            mods = lp[1] if len(lp) > 1 else ""
        is_dpp = op.endswith("_dpp") or any(k in mods for k in ("row_shr", "row_shl", "row_ror", "quad_perm", "row_mirror", "row_half_mirror", "row_bcast", "row_newbcast"))
        is_sdwa = op.endswith("_sdwa") or "dst_sel" in mods
        R = lambda i: regs_of(ops[i]) if i < len(ops) else []
        rd, wr = [], []
        kind = None
        srcA = srcB = srcC = []
        if base.startswith("v_mfma"):
            kind = "mfma"
            wr = R(0); srcA = R(1); srcB = R(2); srcC = R(3)
            rd = srcA + srcB + srcC
            passes = 8 if "32x32x16" in base else 4
            assert ("32x32x16" in base) or ("16x16x32" in base) or ("16x16x16" in base)
        elif base.startswith("v_"):
            kind = "valu"
            if base.startswith("v_permlane") and "swap" in base:
                wr = R(0) + R(1); rd = R(0) + R(1)
            elif base.startswith("v_cmp"):
                wr = R(0); rd = [r for i in range(1, len(ops)) for r in R(i)]
            else:
                wr = R(0); rd = [r for i in range(1, len(ops)) for r in R(i)]
                if base in ("v_fmac_f32", "v_dot2c_f32_bf16", "v_pk_fmac_f16") or is_dpp or is_sdwa or base == "v_writelane_b32":
                    rd = rd + R(0)
                if base == "v_cndmask_b32" and len(ops) == 3:
                    rd = rd + regs_of("vcc")
        elif base.startswith("buffer_load") or base.startswith("global_load"):
            kind = "vmem"
            if " lds" in (" " + mods) or base.startswith("global_load_lds"):
                rd = [r for i in range(len(ops)) for r in R(i)] + [("m", 0)]
                kind = "dma"
            else:
                wr = R(0); rd = [r for i in range(1, len(ops)) for r in R(i)]
        elif base.startswith("buffer_store") or base.startswith("global_store") or base.startswith("global_atomic") or base.startswith("buffer_atomic"):
            kind = "vmem"
            rd = [r for i in range(len(ops)) for r in R(i)]
            if "atomic" in base and "sc0" in mods:
                wr = R(0)
        elif base.startswith("ds_read") or base.startswith("ds_bpermute") or base.startswith("ds_permute") or base.startswith("ds_swizzle"):
            kind = "ds"
            wr = R(0); rd = [r for i in range(1, len(ops)) for r in R(i)]
        elif base.startswith("ds_"):
            kind = "ds"
            rd = [r for i in range(len(ops)) for r in R(i)]
        elif base.startswith("s_load") or base.startswith("s_memtime") or base.startswith("s_memrealtime"):
            kind = "smem"
            wr = R(0); rd = [r for i in range(1, len(ops)) for r in R(i)]
        elif base.startswith("s_"):
            kind = "salu"
            if base.startswith(("s_cmp", "s_waitcnt", "s_barrier", "s_branch", "s_cbranch", "s_nop", "s_endpgm",
                                "s_setprio", "s_bitcmp", "s_sleep", "s_setpc")):
                rd = [r for i in range(len(ops)) for r in R(i)]
            else:
                wr = R(0); rd = [r for i in range(1, len(ops)) for r in R(i)]
                if "saveexec" in base:
                    wr = wr + regs_of("exec"); rd = rd + regs_of("exec")
        else:
            raise ValueError("unknown op " + ln)
        assert base != "s_waitcnt" and base != "s_nop", "use wait()/nop()"

        touched = set(rd) | set(wr)
        need_vm = None
        for k, e in enumerate(st.vmq):
            if e[1] & touched:
                need_vm = self._vm_after(k)
        need_lg = None
        for k, e in enumerate(st.lgq):
            if e[1] & touched:
                need_lg = len(st.lgq) - k - 1
        if need_lg is not None and any(x[2] for x in st.lgq):
            need_lg = 0
        if need_vm is not None or need_lg is not None:
            self.wait(vm=need_vm, lgkm=need_lg)

        need = st.pos
        def req(p, ws):
            nonlocal need
            need = max(need, p + ws + 1)
        is_valu = kind == "valu"
        is_trans = base in TRANS
        is_dot = base.startswith("v_dot")
        for r in rd:
            w = st.wr.get(r)
            if w:
                p, k, ex = w
                if k == "mfma":
                    ps, dregs = ex
                    if kind == "mfma":
                        if r in srcC and r not in srcA and r not in srcB:
                            if tuple(srcC) == dregs and ps == passes:
                                pass
                            else:
                                req(p, 10 if ps == 8 else 6)
                        else:
                            req(p, 12 if ps == 8 else 8)
                    else:
                        req(p, 12 if ps == 8 else 8)
                else:
                    if kind == "mfma":
                        req(p, 3 if k == "dot" else 2)
                    if k == "dot":
                        if not (is_dot and ex == base and r in R(3) and r not in R(1) and r not in R(2)):
                            req(p, 3)
                    if k == "trans" and not is_trans:
                        req(p, 1)
                    if k == "sdwa" and kind in ("valu", "mfma"):
                        req(p, 1)
                    if is_valu and (is_dpp or base.startswith("v_permlane")):
                        req(p, 2)
                    if base in ("v_readfirstlane_b32", "v_readlane_b32"):
                        req(p, 1)
            if r[0] == "s" and r in st.sgpr_valu:
                p = st.sgpr_valu[r]
                if kind in ("valu", "mfma"):
                    req(p, 4 if base in ("v_readlane_b32", "v_writelane_b32") else 2)
                elif kind in ("vmem", "dma"):
                    req(p, 5)
                elif kind in ("salu", "smem"):
                    req(p, 1)
            if r == ("m", 0) and kind == "dma":
                req(st.m0, 1)
        for r in wr:
            w = st.wr.get(r)
            if w:
                p, k, ex = w
                if k == "mfma":
                    ps, dregs = ex
                    if kind == "mfma":
                        if not (tuple(wr) == dregs and ps == passes):
                            req(p, 10 if ps == 8 else 6)
                    else:
                        req(p, 12 if ps == 8 else 8)
                elif k == "dot" and not (is_dot and ex == base):
                    req(p, 3)
            if r in st.mfma_c and kind != "mfma":
                p, ps = st.mfma_c[r]
                req(p, 7 if ps == 8 else 3)
            if r in st.st_data:
                req(st.st_data[r], 2)
        if need > st.pos:
            self.nop(need - st.pos)

        self.lines.append(ln)
        p = st.pos
        st.pos += 1
        ident = None
        if kind == "mfma":
            for r in wr:
                st.wr[r] = (p, "mfma", (passes, tuple(wr)))
            for r in srcC:
                st.mfma_c[r] = (p, passes)
        elif kind == "valu":
            k = "trans" if is_trans else "dot" if is_dot else "sdwa" if (is_sdwa or "op_sel" in mods) else "valu"
            for r in wr:
                if r[0] in ("v", "a"):
                    st.wr[r] = (p, k, base)
                elif r[0] == "s":
                    st.sgpr_valu[r] = p
        elif kind in ("vmem", "dma"):
            st.nid += 1
            ident = st.nid
            st.vmq.append((ident, set(wr), self.maybe))
            for r in wr:
                st.wr.pop(r, None)
            if ("store" in base) and ("x3" in base or "x4" in base):
                d = R(0) if base.startswith("buffer") else R(1)
                for r in d:
                    st.st_data[r] = p
        elif kind == "ds":
            st.nid += 1
            ident = st.nid
            st.lgq.append((ident, set(wr), False))
            for r in wr:
                st.wr.pop(r, None)
        elif kind == "smem":
            st.nid += 1
            ident = st.nid
            st.lgq.append((ident, set(wr), True))
        elif kind == "salu":
            for r in wr:
                if r == ("m", 0):
                    st.m0 = p
                st.sgpr_valu.pop(r, None)
        return ident

    def text(self):
        return "\n".join(self.lines) + "\n"


def v(i, n=1):
    return f"v{i}" if n == 1 else f"v[{i}:{i+n-1}]"


def a(i, n=1):
    return f"a{i}" if n == 1 else f"a[{i}:{i+n-1}]"


def s(i, n=1):
    return f"s{i}" if n == 1 else f"s[{i}:{i+n-1}]"


def r(i, n=1):
    return v(i, n) if i < 256 else a(i - 256, n)


def kdesc(name, nv, acc, ns=102):
    return f""".p2align 6
.amdhsa_kernel {name}
  .amdhsa_next_free_vgpr {nv}
  .amdhsa_next_free_sgpr {ns}
  .amdhsa_accum_offset {acc}
  .amdhsa_group_segment_fixed_size 0
  .amdhsa_kernarg_size 104
  .amdhsa_user_sgpr_count 2
  .amdhsa_user_sgpr_kernarg_segment_ptr 1
  .amdhsa_system_sgpr_workgroup_id_x 1
.end_amdhsa_kernel
"""


def kentry(name):
    return f".globl {name}\n.p2align 8\n.type {name},@function\n{name}:"
```

```python
from asmlib import *
from layout import *

K1_WB = 0
K1_XB = 57344
K1_WOB = 114688
K1_EXS = 116736
K1_EXC = 117760
K1_EXV = 118272
K1_LDS = 119296

ONES = 0x3F803F80


def bf16r(A, dst, src):
    A(f"v_cvt_pk_bf16_f32 {dst}, {src}, {src}")
    A(f"v_lshlrev_b32 {dst}, 16, {dst}")


def ln_stats(A, vsum, vsq, vm, vrs, t0):
    A(f"v_mul_f32 {vsum}, 0x3b124925, {vsum}")
    A(f"v_mul_f32 {vsq}, 0x3b124925, {vsq}")
    A(f"v_fma_f32 {vsq}, -{vsum}, {vsum}, {vsq}")
    A(f"v_max_f32 {vsq}, 0, {vsq}")
    bf16r(A, vm, vsum)
    bf16r(A, t0, vsq)
    A(f"v_add_f32 {t0}, 0x3727c5ac, {t0}")
    bf16r(A, t0, t0)
    A(f"v_sqrt_f32 {t0}, {t0}")
    bf16r(A, t0, t0)
    A(f"v_rcp_f32 {vrs}, {t0}")


def gen_k1(A, name, prefetch=None):
    A.reset()
    A.raw(kentry(name))
    A("s_cmp_ge_u32 s2, 256")
    A(f"s_cbranch_scc1 L_{name}_end")
    A.tl_begin(0, 32)
    A("s_load_dwordx8 s[4:11], s[0:1], 0")
    A("s_load_dwordx2 s[12:13], s[0:1], 32")
    A("s_load_dwordx2 s[14:15], s[0:1], 96")
    LANE, T0, T1, T2, T3 = 1, 2, 3, 4, 5
    XO0, XO1, WO_, WOO = 6, 7, 8, 9
    XA, WA = 10, 14
    SUM0, SUM1, SQ0, SQ1, CS0, CS1 = 18, 19, 20, 21, 22, 23
    WOT = 24
    OA = 25
    FB = 32
    ACC = 96
    E = 112
    sW, sTB, sCB, sTH, sCH = 32, 33, 34, 35, 36
    sX0, sX1, sW0, sW1 = 37, 38, 39, 40
    sMX0, sMX1, sMW0, sMW1 = 41, 42, 43, 44
    sONE = 45
    sT0, sT1, sT2, sT3 = 46, 47, 48, 49
    A(f"v_and_b32 v{LANE}, 63, v0")
    A(f"v_lshrrev_b32 v{T0}, 6, v0")
    A(f"v_readfirstlane_b32 s{sW}, v{T0}")
    A(f"s_and_b32 s{sTB}, s2, 31")
    A(f"s_lshr_b32 s{sCB}, s2, 5")
    A(f"s_mov_b32 s{sONE}, 0x{ONES:x}")
    A(f"v_lshrrev_b32 v{T0}, 3, v{LANE}")
    A(f"v_mul_u32_u24 v{T1}, 896, v{T0}")
    A(f"v_lshrrev_b32 v{T2}, 4, v{LANE}")
    A(f"v_and_b32 v{T3}, 7, v{LANE}")
    A(f"v_xor_b32 v{T2}, v{T2}, v{T3}")
    A(f"v_lshl_add_u32 v{XO0}, v{T2}, 4, v{T1}")
    A(f"v_xor_b32 v{T2}, 4, v{T2}")
    A(f"v_lshl_add_u32 v{XO1}, v{T2}, 4, v{T1}")
    A(f"s_and_b32 s{sTH}, s{sW}, 1")
    A(f"s_lshr_b32 s{sCH}, s{sW}, 1")
    A(f"s_lshl_b32 s{sT0}, s{sTB}, 6")
    A(f"s_lshl_b32 s{sT1}, s{sW}, 4")
    A(f"s_add_u32 s{sT0}, s{sT0}, s{sT1}")
    A(f"s_mul_i32 s{sX0}, s{sT0}, 896")
    A(f"s_add_u32 s{sX1}, s{sX0}, 7168")
    A(f"s_lshl_b32 s{sT1}, s{sW}, 11")
    A(f"s_add_u32 s{sMX0}, s{sT1}, {K1_XB}")
    A(f"s_add_u32 s{sMX1}, s{sT1}, {K1_XB + 1024}")
    A(f"s_mul_i32 s{sT2}, s2, 4682")
    A(f"s_lshr_b32 s{sT2}, s{sT2}, 16")
    A(f"s_mul_i32 s{sT3}, s{sT2}, 14")
    A(f"s_sub_u32 s{sT3}, s2, s{sT3}")
    A(f"v_lshrrev_b32 v{T2}, 2, v{LANE}")
    A(f"v_mul_u32_u24 v{T2}, 896, v{T2}")
    A(f"v_and_b32 v{T3}, 3, v{LANE}")
    A(f"v_lshl_add_u32 v{WOO}, v{T3}, 4, v{T2}")
    A("s_mov_b32 s18, 1835008\ns_mov_b32 s19, 0x20000")
    A("s_mov_b32 s23, 0x20000")
    A("s_mov_b32 s26, 401408\ns_mov_b32 s27, 0x20000")
    A(f"s_mov_b32 s30, 0x{WS_SIZE:x}\ns_mov_b32 s31, 0x20000")
    A("s_mov_b32 s16, s4\ns_mov_b32 s17, s5")
    A("s_mov_b32 s24, s12\ns_mov_b32 s25, s13")
    A("s_mov_b32 s28, s14\ns_mov_b32 s29, s15")
    sWOs, sFI = 50, 51
    A(f"s_lshl_b32 s{sWOs}, s{sT2}, 5")
    A(f"s_lshl_b32 s{sT0}, s{sTH}, 4")
    A(f"s_add_u32 s{sWOs}, s{sWOs}, s{sT0}")
    A(f"s_mul_i32 s{sWOs}, s{sWOs}, 896")
    A(f"s_lshl_b32 s{sT0}, s{sT3}, 6")
    A(f"s_add_u32 s{sWOs}, s{sWOs}, s{sT0}")
    A(f"s_lshl_b32 s{sT0}, s{sTH}, 10")
    A(f"s_add_u32 m0, s{sT0}, {K1_WOB}")
    A(f"s_cmp_lt_u32 s2, 196")
    A(f"s_cselect_b32 s52, 1, 0")
    A(f"s_cmp_lt_u32 s{sW}, 2")
    A(f"s_cselect_b32 s52, s52, 0")
    A(f"s_cmp_eq_u32 s52, 0")
    A(f"s_cbranch_scc1 L_{name}_nowo")
    tok = A.cond_begin()
    A(f"buffer_load_dwordx4 v{WOO}, s[24:27], s{sWOs} offen lds")
    A.cond_end(tok)
    A.label(f"L_{name}_nowo")
    A(f"s_lshl_b32 s{sT0}, s{sT3}, 1")
    A(f"s_add_u32 s{sT0}, s{sT0}, s{sTH}")
    A(f"s_mul_i32 s{sT1}, s{sT0}, 37")
    A(f"s_lshr_b32 s{sT1}, s{sT1}, 8")
    A(f"s_mul_i32 s{sFI}, s{sT1}, 91")
    A(f"s_add_u32 s{sFI}, s{sFI}, s{sT0}")
    A(f"s_mul_i32 s{sT1}, s{sT2}, 7")
    A(f"s_add_u32 s{sFI}, s{sFI}, s{sT1}")
    A(f"s_lshl_b32 s{sFI}, s{sFI}, 10")
    A(f"s_add_u32 s{sFI}, s{sFI}, 0x{WS_WOF:x}")
    A(f"s_cmp_eq_u32 s{sCB}, 7")
    A(f"s_cbranch_scc1 L_{name}_kv")
    st0 = A.fork()

    def common_addr():
        A(f"v_and_b32 v{T0}, 31, v{LANE}")
        A(f"s_lshl_b32 s{sT0}, s{sTH}, 12")
        A(f"s_add_u32 s{sT0}, s{sT0}, {K1_XB}")
        A(f"v_lshlrev_b32 v{T0}, 7, v{T0}")
        A(f"v_add_u32 v{T0}, s{sT0}, v{T0}")
        A(f"v_lshrrev_b32 v{T1}, 5, v{LANE}")
        A(f"v_bfe_u32 v{T2}, v{LANE}, 1, 3")
        A(f"v_xor_b32 v{T1}, v{T1}, v{T2}")
        A(f"s_lshl_b32 s{sT1}, s{sW}, 1")
        A(f"v_xor_b32 v{T1}, s{sT1}, v{T1}")
        for sl in range(4):
            if sl == 0:
                A(f"v_lshl_add_u32 v{XA}, v{T1}, 4, v{T0}")
            else:
                A(f"v_xor_b32 v{T2}, {2*sl}, v{T1}")
                A(f"v_lshl_add_u32 v{XA+sl}, v{T2}, 4, v{T0}")
        A(f"v_lshrrev_b32 v{T0}, 4, v{LANE}")
        A(f"v_bfe_u32 v{T1}, v{LANE}, 2, 2")
        A(f"v_lshl_add_u32 v{T0}, v{T0}, 3, v{T1}")
        A(f"v_lshlrev_b32 v{T0}, 6, v{T0}")
        A(f"v_and_b32 v{T1}, 3, v{LANE}")
        A(f"v_lshl_add_u32 v{T0}, v{T1}, 3, v{T0}")
        A(f"s_lshl_b32 s{sT0}, s{sTH}, 5")
        A(f"s_add_u32 s{sT0}, s{sT0}, {K1_WOB}")
        A(f"v_add_u32 v{WOT}, s{sT0}, v{T0}")
        for rr in (SUM0, SUM1, SQ0, SQ1, CS0, CS1):
            A(f"v_mov_b32 v{rr}, 0")

    def wo_store(tag):
        A(f"s_cmp_eq_u32 s52, 0")
        A(f"s_cbranch_scc1 L_{name}_nowo2{tag}")
        tok = A.cond_begin()
        A(f"ds_read_b64_tr_b16 v[{E}:{E+1}], v{WOT}")
        A(f"ds_read_b64_tr_b16 v[{E+2}:{E+3}], v{WOT} offset:256")
        A(f"v_lshlrev_b32 v{T0}, 4, v{LANE}")
        A(f"buffer_store_dwordx4 v[{E}:{E+3}], v{T0}, s[28:31], s{sFI} offen")
        A.cond_end(tok)
        A.label(f"L_{name}_nowo2{tag}")

    def mainloop(variant, ids, tag):
        def reads(c):
            fb = FB + 32 * (c & 1)
            for sl in range(4):
                wreg = fb + 8 * sl
                if variant == "q":
                    o0, o1 = c * 8192, c * 8192 + 512
                else:
                    o0, o1 = c * 3584, c * 3584 + 224
                A(f"ds_read_b64_tr_b16 v[{wreg}:{wreg+1}], v{WA+sl} offset:{o0}")
                A(f"ds_read_b64_tr_b16 v[{wreg+2}:{wreg+3}], v{WA+sl} offset:{o1}")
                A(f"ds_read_b128 v[{wreg+4}:{wreg+7}], v{XA+sl} offset:{c*8192}")

        def dots(c):
            fb = FB + 32 * (c & 1)
            out = []
            for sl in (0, 1):
                x = fb + 8 * sl + 4
                for i in range(4):
                    out.append(f"v_dot2_f32_bf16 v{SUM0+(i&1)}, v{x+i}, s{sONE}, v{SUM0+(i&1)}")
                    out.append(f"v_dot2_f32_bf16 v{SQ0+(i&1)}, v{x+i}, v{x+i}, v{SQ0+(i&1)}")
            for sl in (0, 2):
                wv = fb + 8 * sl
                for i in range(4):
                    out.append(f"v_dot2_f32_bf16 v{CS0+(i&1)}, v{wv+i}, s{sONE}, v{CS0+(i&1)}")
            return out

        pend = []
        for c in range(7):
            A.wait_vm_id(ids[c])
            A("s_barrier")
            reads(c)
            for d in pend:
                A(d)
            fb = FB + 32 * (c & 1)
            for sl in range(4):
                wreg = fb + 8 * sl
                cin = "0" if (c == 0 and sl == 0) else v(ACC, 16)
                if variant == "v":
                    A(f"v_mfma_f32_32x32x16_bf16 {v(ACC,16)}, {v(wreg+4,4)}, {v(wreg,4)}, {cin}")
                else:
                    A(f"v_mfma_f32_32x32x16_bf16 {v(ACC,16)}, {v(wreg,4)}, {v(wreg+4,4)}, {cin}")
            d = dots(c)
            h = 12 if c < 6 else 24
            for x in d[:h]:
                A(x)
            pend = d[h:]
            if c == 0:
                wo_store(tag)

    def exchange():
        A(f"v_add_f32 v{SUM0}, v{SUM0}, v{SUM1}")
        A(f"v_add_f32 v{SQ0}, v{SQ0}, v{SQ1}")
        A(f"v_add_f32 v{CS0}, v{CS0}, v{CS1}")
        A(f"v_mov_b32 v{SUM1}, v{SUM0}")
        A(f"v_mov_b32 v{SQ1}, v{SQ0}")
        A(f"v_mov_b32 v{CS1}, v{CS0}")
        A(f"v_and_b32 v{T0}, 31, v{LANE}")
        A(f"s_lshl_b32 s{sT0}, s{sW}, 8")
        A(f"v_permlane32_swap_b32 v{SUM0}, v{SUM1}")
        A(f"v_permlane32_swap_b32 v{SQ0}, v{SQ1}")
        A(f"v_permlane32_swap_b32 v{CS0}, v{CS1}")
        A(f"v_lshl_add_u32 v{T1}, v{T0}, 3, s{sT0}")
        A(f"v_add_f32 v{E}, v{SUM0}, v{SUM1}")
        A(f"v_add_f32 v{E+1}, v{SQ0}, v{SQ1}")
        A(f"v_add_f32 v{E+2}, v{CS0}, v{CS1}")
        A(f"v_lshrrev_b32 v{T2}, 1, v{T1}")
        A(f"v_add_u32 v{T1}, {K1_EXS}, v{T1}")
        A(f"v_add_u32 v{T2}, {K1_EXC}, v{T2}")
        A(f"ds_write_b64 v{T1}, v[{E}:{E+1}]")
        A(f"ds_write_b32 v{T2}, v{E+2}")
        A(f"s_lshl_b32 s{sT0}, s{sTH}, 8")
        A(f"s_add_u32 s{sT0}, s{sT0}, {K1_EXS}")
        A(f"v_lshl_add_u32 v{T1}, v{T0}, 3, s{sT0}")
        A.wait(lgkm=0)
        A("s_barrier")
        A(f"ds_read_b64 v[{E}:{E+1}], v{T1}")
        A(f"ds_read_b64 v[{E+2}:{E+3}], v{T1} offset:512")

    def stats_finish(scale):
        A(f"v_add_f32 v{E}, v{E}, v{E+2}")
        A(f"v_add_f32 v{E+1}, v{E+1}, v{E+3}")
        ln_stats(A, f"v{E}", f"v{E+1}", f"v{E+2}", f"v{E+5}", f"v{E+3}")
        if scale is not None:
            A(f"v_mul_f32 v{E+5}, 0x{scale:x}, v{E+5}")
        A(f"v_mul_f32 v{E+4}, -v{E+2}, v{E+5}" .replace("v_mul_f32", "v_mul_f32_e64"))

    def epilogue_qk(variant):
        exchange()
        A(f"v_lshrrev_b32 v{T2}, 5, v{LANE}")
        A(f"s_lshl_b32 s{sT0}, s{sCH}, 8")
        A(f"s_add_u32 s{sT0}, s{sT0}, {K1_EXC}")
        A(f"v_lshl_add_u32 v{T2}, v{T2}, 4, s{sT0}")
        C0, C1 = E + 8, E + 24
        for a_ in range(4):
            A(f"ds_read_b128 {v(C0+4*a_,4)}, v{T2} offset:{32*a_}")
            A(f"ds_read_b128 {v(C1+4*a_,4)}, v{T2} offset:{128+32*a_}")
        import struct, math
        sc = None
        if variant == "q":
            sc = struct.unpack("<I", struct.pack("<f", math.log2(math.e) / math.sqrt(28.0)))[0]
        stats_finish(sc)
        P = FB
        for i in range(0, 16, 2):
            A(f"v_pk_add_f32 {v(C0+i,2)}, {v(C0+i,2)}, {v(C1+i,2)}")
            A(f"v_pk_mul_f32 {v(C0+i,2)}, {v(C0+i,2)}, {v(E+4,2)} op_sel_hi:[1,0]")
            A(f"v_pk_fma_f32 {v(C0+i,2)}, {v(ACC+i,2)}, {v(E+4,2)}, {v(C0+i,2)} op_sel:[0,1,0] op_sel_hi:[1,1,1]")
            A(f"v_cvt_pk_bf16_f32 v{P+i//2}, v{C0+i}, v{C0+i+1}")
        if variant == "q":
            A(f"v_and_b32 v{T0}, 31, v{LANE}")
            A(f"v_mul_u32_u24 v{T0}, 896, v{T0}")
            A(f"v_lshrrev_b32 v{T1}, 5, v{LANE}")
            A(f"v_lshl_add_u32 v{T0}, v{T1}, 4, v{T0}")
            A(f"s_lshl_b32 s{sT0}, s{sTB}, 1")
            A(f"s_add_u32 s{sT0}, s{sT0}, s{sTH}")
            A(f"s_mul_i32 s{sT0}, s{sT0}, {32*896}")
            A(f"s_lshl_b32 s{sT1}, s{sCB}, 7")
            A(f"s_add_u32 s{sT0}, s{sT0}, s{sT1}")
            A(f"s_lshl_b32 s{sT1}, s{sCH}, 6")
            A(f"s_add_u32 s{sT0}, s{sT0}, s{sT1}")
            if WS_Q:
                A(f"s_add_u32 s{sT0}, s{sT0}, 0x{WS_Q:x}")
            A(f"v_permlane32_swap_b32 v{P}, v{P+2}")
            A(f"v_permlane32_swap_b32 v{P+1}, v{P+3}")
            A(f"v_permlane32_swap_b32 v{P+4}, v{P+6}")
            A(f"v_permlane32_swap_b32 v{P+5}, v{P+7}")
            A(f"buffer_store_dwordx4 {v(P,4)}, v{T0}, s[28:31], s{sT0} offen")
            A(f"buffer_store_dwordx4 {v(P+4,4)}, v{T0}, s[28:31], s{sT0} offen offset:32")
        else:
            A("s_mov_b32 exec_lo, 0")
            A(f"v_mov_b32 v{P+6}, s{sONE}")
            A(f"v_mov_b32 v{P+7}, 0x3f80")
            A("s_mov_b32 exec_lo, -1")
            kv_store(P, 0)
        A.end()

    def kv_store(P, off):
        A(f"v_lshlrev_b32 v{T0}, 4, v{LANE}")
        A(f"s_lshl_b32 s{sT0}, s{sTB}, 1")
        A(f"s_add_u32 s{sT0}, s{sT0}, s{sTH}")
        A(f"s_lshl_b32 s{sT0}, s{sT0}, 12")
        A(f"s_add_u32 s{sT0}, s{sT0}, 0x{WS_KV:x}")
        A(f"buffer_store_dwordx4 {v(P,4)}, v{T0}, s[28:31], s{sT0} offen offset:{off}")
        A(f"buffer_store_dwordx4 {v(P+4,4)}, v{T0}, s[28:31], s{sT0} offen offset:{off+1024}")

    def epilogue_v():
        exchange()
        A(f"s_lshl_b32 s{sT0}, s{sCH}, 8")
        A(f"s_add_u32 s{sT0}, s{sT0}, {K1_EXC}")
        A(f"v_lshl_add_u32 v{T2}, v{T0}, 2, s{sT0}")
        A(f"ds_read_b32 v{E+6}, v{T2}")
        A(f"ds_read_b32 v{E+7}, v{T2} offset:128")
        stats_finish(None)
        A(f"s_lshl_b32 s{sT0}, s{sW}, 8")
        A(f"s_add_u32 s{sT0}, s{sT0}, {K1_EXV}")
        A(f"v_lshl_add_u32 v{T2}, v{T0}, 3, s{sT0}")
        A(f"ds_write_b64 v{T2}, v[{E+4}:{E+5}]")
        A(f"v_lshrrev_b32 v{T2}, 5, v{LANE}")
        A(f"v_lshl_add_u32 v{T2}, v{T2}, 5, s{sT0}")
        A(f"v_add_f32 v{E+6}, v{E+6}, v{E+7}")
        C0 = E + 8
        A.wait(lgkm=0)
        for a_ in range(4):
            A(f"ds_read_b128 {v(C0+8*a_,4)}, v{T2} offset:{64*a_}")
            A(f"ds_read_b128 {v(C0+8*a_+4,4)}, v{T2} offset:{64*a_+16}")
        P = FB
        for i in range(16):
            A(f"v_mul_f32 v{C0+2*i}, v{C0+2*i}, v{E+6}")
            A(f"v_fma_f32 v{C0+2*i}, v{ACC+i}, v{C0+2*i+1}, v{C0+2*i}")
            if i & 1:
                A(f"v_cvt_pk_bf16_f32 v{P+i//2}, v{C0+2*i-2}, v{C0+2*i}")
        A("s_mov_b32 exec_lo, 0xe0000000")
        A("s_mov_b32 exec_hi, 0xe0000000")
        for i in range(8):
            A(f"v_mov_b32 v{P+i}, 0")
        A("s_mov_b32 exec_lo, 0x10000000")
        A("s_mov_b32 exec_hi, 0x10000000")
        for i in range(8):
            A(f"v_mov_b32 v{P+i}, s{sONE}")
        A("s_mov_b64 exec, -1")
        kv_store(P, 2048)
        A.end()

    A(f"v_lshrrev_b32 v{T0}, 3, v{LANE}")
    A(f"v_mul_u32_u24 v{T1}, 896, v{T0}")
    A(f"v_lshrrev_b32 v{T2}, 1, v{LANE}")
    A(f"v_xor_b32 v{T2}, v{T2}, v{T0}")
    A(f"v_and_b32 v{T2}, 3, v{T2}")
    A(f"v_lshl_add_u32 v{T1}, v{T2}, 5, v{T1}")
    A(f"v_and_b32 v{T2}, 1, v{LANE}")
    A(f"v_lshl_add_u32 v{WO_}, v{T2}, 4, v{T1}")
    A("s_mov_b32 s20, s6\ns_mov_b32 s21, s7\ns_mov_b32 s22, 401408")
    A(f"s_mul_i32 s{sW0}, s{sW}, {16*896}")
    A(f"s_lshl_b32 s{sT0}, s{sCB}, 7")
    A(f"s_add_u32 s{sW0}, s{sW0}, s{sT0}")
    A(f"s_add_u32 s{sW1}, s{sW0}, 7168")
    A(f"s_lshl_b32 s{sMW0}, s{sW}, 11")
    ids = []
    for c in range(7):
        A(f"s_add_u32 m0, s{sMX0}, {c*8064}")
        A(f"buffer_load_dwordx4 v{XO0}, s[16:19], s{sX0} offen offset:{c*128} lds")
        A(f"s_add_u32 m0, s{sMX1}, {c*8064}")
        A(f"buffer_load_dwordx4 v{XO1}, s[16:19], s{sX1} offen offset:{c*128} lds")
        A(f"s_add_u32 m0, s{sMW0}, {K1_WB + c*8192}")
        A(f"buffer_load_dwordx4 v{WO_}, s[20:23], s{sW0} offen lds")
        A(f"s_add_u32 m0, s{sMW0}, {K1_WB + c*8192 + 1024}")
        if c < 6:
            A(f"s_add_u32 s{sW0}, s{sW0}, 57344")
        i = A(f"buffer_load_dwordx4 v{WO_}, s[20:23], s{sW1} offen lds")
        if c < 6:
            A(f"s_add_u32 s{sW1}, s{sW1}, 57344")
        ids.append(i)
    if prefetch:
        prefetch(A, LANE, T0, T1, sW, E + 40)
    common_addr()
    A(f"v_lshrrev_b32 v{T0}, 5, v{LANE}")
    A(f"v_bfe_u32 v{T1}, v{LANE}, 2, 2")
    A(f"v_lshl_add_u32 v{T0}, v{T0}, 3, v{T1}")
    A(f"v_lshlrev_b32 v{T0}, 7, v{T0}")
    A(f"v_bfe_u32 v{T2}, v{LANE}, 4, 1")
    A(f"s_lshl_b32 s{sT0}, s{sCH}, 1")
    A(f"v_or_b32 v{T2}, s{sT0}, v{T2}")
    A(f"v_xor_b32 v{T2}, v{T2}, v{T1}")
    A(f"v_lshl_add_u32 v{T0}, v{T2}, 5, v{T0}")
    A(f"v_and_b32 v{T2}, 3, v{LANE}")
    A(f"v_lshl_add_u32 v{T0}, v{T2}, 3, v{T0}")
    for sl in range(4):
        A(f"s_xor_b32 s{sT0}, s{sW}, {sl}")
        A(f"s_lshl_b32 s{sT0}, s{sT0}, 11")
        A(f"v_add_u32 v{WA+sl}, s{sT0}, v{T0}")
    mainloop("q", ids, "q")
    epilogue_qk("q")

    A.restore(st0)
    A.label(f"L_{name}_kv")
    A(f"s_cmp_eq_u32 s{sCH}, 0")
    A("s_cselect_b32 s20, s8, s10")
    A("s_cselect_b32 s21, s9, s11")
    A("s_mov_b32 s22, 25088")
    A(f"v_lshlrev_b32 v{WO_}, 4, v{LANE}")
    A(f"s_lshl_b32 s{sW0}, s{sTH}, 11")
    A(f"s_mul_i32 s{sMW0}, s{sCH}, 25600")
    A(f"s_add_u32 s{sMW0}, s{sMW0}, s{sW0}")
    ids = []
    for c in range(7):
        A(f"s_add_u32 m0, s{sMX0}, {c*8064}")
        A(f"buffer_load_dwordx4 v{XO0}, s[16:19], s{sX0} offen offset:{c*128} lds")
        A(f"s_add_u32 m0, s{sMX1}, {c*8064}")
        A(f"buffer_load_dwordx4 v{XO1}, s[16:19], s{sX1} offen offset:{c*128} lds")
        A(f"s_add_u32 m0, s{sMW0}, {K1_WB + c*3584}")
        A(f"buffer_load_dwordx4 v{WO_}, s[20:23], s{sW0} offen lds")
        i = A(f"buffer_load_dwordx4 v{WO_}, s[20:23], s{sW0} offen offset:1024 lds")
        if c < 6:
            A(f"s_add_u32 s{sW0}, s{sW0}, 3584")
        ids.append(i)
    common_addr()
    A(f"v_lshrrev_b32 v{T0}, 5, v{LANE}")
    A(f"v_bfe_u32 v{T1}, v{LANE}, 2, 2")
    A(f"v_lshl_add_u32 v{T0}, v{T0}, 3, v{T1}")
    A(f"v_mul_u32_u24 v{T0}, 56, v{T0}")
    A(f"v_bfe_u32 v{T2}, v{LANE}, 4, 1")
    A(f"v_lshl_add_u32 v{T0}, v{T2}, 5, v{T0}")
    A(f"v_and_b32 v{T2}, 3, v{LANE}")
    A(f"v_lshl_add_u32 v{T0}, v{T2}, 3, v{T0}")
    A(f"s_mul_i32 s{sT1}, s{sCH}, 25600")
    for sl in range(4):
        A(f"s_xor_b32 s{sT0}, s{sW}, {sl}")
        A(f"s_mul_i32 s{sT0}, s{sT0}, 896")
        A(f"s_add_u32 s{sT0}, s{sT0}, s{sT1}")
        A(f"v_add_u32 v{WA+sl}, s{sT0}, v{T0}")
    A(f"s_cmp_eq_u32 s{sCH}, 1")
    A(f"s_cbranch_scc1 L_{name}_v")
    st1 = A.fork()
    mainloop("k", ids, "k")
    epilogue_qk("k")
    A.restore(st1)
    A.label(f"L_{name}_v")
    mainloop("v", ids, "v")
    epilogue_v()
    A.label(f"L_{name}_end")
    A("s_endpgm")
    return kdesc(name, 168, 168)
```

```python
from asmlib import *
from layout import *
from k1 import bf16r, ln_stats

K2_LWO = 0
K2_RED = 86016
K2_OB = 135168
OSTR = 1824
K2_FLG = K2_OB + 8 * OSTR
K2_ST = K2_FLG + 16
K2_LDS = K2_ST + 512
K2_MX = K2_RED

NREG_SLOTS = 11


def gen_k2(A, name, dbg_time=False):
    A.reset()
    A.raw(kentry(name))
    L16, LANE, L16B = 0, 1, 2
    T0, T1, T2, T3, T4 = 3, 4, 5, 6, 7
    MISC4 = 8
    S = [12, 28]
    P = 44
    KV = 52
    O0 = 100
    WOFV = 116
    AO = 256 + 0
    AQ = 256 + 48
    WOFA = 256 + 80
    ASP = 256 + 248
    PZ = S[1]

    def Oreg(b):
        return O0 if b == 0 else AO + 16 * (b - 1)

    def woreg(slot, jn):
        f = slot * 7 + jn
        if slot < NREG_SLOTS:
            return WOFV + 4 * f if f < 35 else WOFA + 4 * (f - 35)
        f -= NREG_SLOTS * 7
        return AO + 4 * f if f < 20 else ASP

    sW, sG, sROT, sKV, sWO = 36, 37, 38, 39, 40
    sQ = 41
    sPASS = 45
    sT0, sT1, sT2, sT3 = 46, 47, 48, 49
    sROW = 50
    sR14 = 51
    sLW = 52
    sKV0, sWO0 = 53, 54

    nst = [0]
    def stamp():
        if dbg_time:
            A(f"s_memtime s[{60+2*nst[0]}:{61+2*nst[0]}]")
            A.wait(lgkm=0)
            nst[0] += 1
    def stamp_store():
        if dbg_time:
            stamp()
            A("s_mov_b64 exec, 1")
            A(f"s_lshl_b32 s{sT0}, s2, 2")
            A(f"s_add_u32 s{sT0}, s{sT0}, s{sW}")
            A(f"s_lshl_b32 s{sT0}, s{sT0}, 7")
            A(f"s_add_u32 s{sT0}, s{sT0}, 0x{WS_DBG:x}")
            A(f"v_mov_b32 v{T0}, 0")
            for i in range(nst[0]):
                A(f"v_mov_b32 v{T1}, s{60+2*i}")
                A(f"buffer_store_dword v{T1}, v{T0}, s[12:15], s{sT0} offen offset:{4*i}")
    A("s_cmp_ge_u32 s2, 256")
    A(f"s_cbranch_scc1 L_{name}_end")
    stamp()
    A("s_load_dwordx2 s[4:5], s[0:1], 0")
    A("s_load_dwordx2 s[6:7], s[0:1], 48")
    A("s_load_dwordx2 s[8:9], s[0:1], 80")
    A("s_load_dwordx2 s[10:11], s[0:1], 96")
    A(f"v_and_b32 v{LANE}, 63, v0")
    A(f"v_lshrrev_b32 v{T0}, 6, v0")
    A(f"v_readfirstlane_b32 s{sW}, v{T0}")
    A(f"v_lshlrev_b32 v{L16}, 4, v{LANE}")
    A(f"v_add_u32 v{L16B}, 4096, v{L16}")
    A(f"s_and_b32 s{sT0}, s2, 7")
    A(f"s_lshl_b32 s{sT0}, s{sT0}, 3")
    A(f"s_bfe_u32 s{sT1}, s2, 0x30003")
    A(f"s_or_b32 s{sT0}, s{sT0}, s{sT1}")
    A(f"s_and_b32 s{sT1}, s2, 0xc0")
    A(f"s_or_b32 s{sG}, s{sT0}, s{sT1}")
    A(f"s_mul_i32 s{sROW}, s{sG}, 7168")
    A(f"s_lshr_b32 s{sROT}, s2, 3")
    A(f"s_cmp_ge_u32 s{sROT}, 28")
    A(f"s_cselect_b32 s{sT0}, 28, 0")
    A(f"s_sub_u32 s{sR14}, s{sROT}, s{sT0}")
    A(f"s_cmp_ge_u32 s{sR14}, 14")
    A(f"s_cselect_b32 s{sT0}, 14, 0")
    A(f"s_sub_u32 s{sR14}, s{sR14}, s{sT0}")
    A(f"s_and_b32 s{sKV0}, s{sROT}, 15")
    A(f"s_lshl_b32 s{sKV0}, s{sKV0}, 12")
    A(f"s_mul_i32 s{sWO0}, s{sR14}, 7168")
    A(f"s_mul_i32 s{sLW}, s{sW}, 21504")
    A(f"s_mov_b32 s{sPASS}, 0")
    for b in range(4):
        A(f"s_add_u32 s{sT0}, s{sW}, {b}")
        A(f"s_and_b32 s{sT0}, s{sT0}, 3")
        A(f"s_mul_i32 s{sT0}, s{sT0}, 1792")
        A(f"s_add_u32 s{sQ+b}, s{sT0}, s{sROW}")
        if WS_Q:
            A(f"s_add_u32 s{sQ+b}, s{sQ+b}, 0x{WS_Q:x}")
    A(f"v_bfe_u32 v{T0}, v{LANE}, 4, 1")
    A(f"v_mul_u32_u24 v{T0}, 896, v{T0}")
    A(f"v_and_b32 v{T1}, 15, v{LANE}")
    A(f"v_mul_u32_u24 v{T1}, 56, v{T1}")
    A(f"v_lshrrev_b32 v{T2}, 5, v{LANE}")
    A(f"v_lshlrev_b32 v{T2}, 3, v{T2}")
    A(f"v_add3_u32 v{T4}, v{T0}, v{T1}, v{T2}")
    for i in range(8):
        A(f"v_mov_b32 v{PZ+i}, 0")
    A(f"s_mov_b32 s14, 0x{WS_SIZE:x}\ns_mov_b32 s15, 0x20000")
    A("s_mov_b32 s18, 65536\ns_mov_b32 s19, 0x20000")
    A("s_mov_b32 s22, 100352\ns_mov_b32 s23, 0x20000")
    A("s_mov_b32 s26, 1835008\ns_mov_b32 s27, 0x20000")
    A("s_mov_b32 s30, 1835008\ns_mov_b32 s31, 0x20000")
    A("s_mov_b32 s34, 896\ns_mov_b32 s35, 0x20000")
    A(f"s_lshl_b32 s{sT0}, s{sW}, 16")
    A(f"s_add_u32 s{sT0}, s{sT0}, 0x{WS_KV:x}")
    A(f"s_mul_i32 s{sT1}, s{sW}, 100352")
    A(f"s_add_u32 s{sT1}, s{sT1}, 0x{WS_WOF:x}")
    A("s_mov_b32 s12, s10\ns_mov_b32 s13, s11")
    A(f"s_add_u32 s16, s10, s{sT0}\ns_addc_u32 s17, s11, 0")
    A(f"s_add_u32 s20, s10, s{sT1}\ns_addc_u32 s21, s11, 0")
    A("s_mov_b32 s24, s4\ns_mov_b32 s25, s5")
    A("s_mov_b32 s28, s8\ns_mov_b32 s29, s9")
    A("s_mov_b32 s32, s6\ns_mov_b32 s33, s7")

    def load_q():
        for b in range(4):
            for mf in range(2):
                for pc in range(2):
                    if mf == 1 and pc == 1:
                        continue
                    A(f"buffer_load_dwordx2 {r(AQ+8*b+4*mf+2*pc,2)}, v{T4}, s[12:15], s{sQ+b} offen offset:{32*mf+16*pc}")
        A("s_mov_b32 exec_hi, 0")
        for b in range(4):
            A(f"buffer_load_dwordx2 {r(AQ+8*b+6,2)}, v{T4}, s[12:15], s{sQ+b} offen offset:48")
        A("s_mov_b32 exec_hi, -1")

    def kv_loads(i, part):
        base = KV + 16 * (i % 3) + 8 * part
        return [f"buffer_load_dwordx4 {v(base+4*m,4)}, v{L16}, s[16:19], s{sKV} offen offset:{2048*part+1024*m}" for m in range(2)]

    def kv_adv():
        return [f"s_add_u32 s{sKV}, s{sKV}, 4096", f"s_and_b32 s{sKV}, s{sKV}, 0xffff"]

    A.label(f"L_{name}_start")
    for b in range(4):
        A(f"v_accvgpr_write_b32 {r(AQ+8*b+6)}, v{PZ+2*b}")
        A(f"v_accvgpr_write_b32 {r(AQ+8*b+7)}, v{PZ+2*b+1}")
    A(f"s_mov_b32 s{sKV}, s{sKV0}")
    A(f"s_mov_b32 s{sWO}, s{sWO0}")
    for x in kv_loads(0, 0):
        A(x)
    load_q()
    for x in kv_loads(0, 1):
        A(x)
    for i in (1, 2):
        for x in kv_adv():
            A(x)
        for x in kv_loads(i, 0) + kv_loads(i, 1):
            A(x)

    extras_kv = []
    for i in range(13):
        t = i + 3
        extras_kv.append((4 * i + 3, "\n".join(kv_adv())))
        for x in kv_loads(t, 0):
            extras_kv.append((4 * i + 3, x))
        for x in kv_loads(t, 1):
            extras_kv.append((4 * i + 5, x))
    XR = KV + 16
    WR = KV + 24
    EV = T3
    EW = T2
    sE = 55
    sEW = 56
    extras_end = []
    for k in range(4):
        extras_end.append((58, f"buffer_load_dwordx2 {v(XR+2*k,2)}, v{EV}, s[24:27], s{sE} offen offset:{32*k}"))
        extras_end.append((58, f"buffer_load_dwordx2 {v(WR+2*k,2)}, v{EW}, s[32:35], s{sEW} offen offset:{32*k}"))
    extras_wo = []
    order = list(range(14))
    for slot in order:
        if slot > 0:
            extras_wo += [f"s_add_u32 s{sWO}, s{sWO}, 7168",
                          f"s_cmp_ge_u32 s{sWO}, 100352\ns_cselect_b32 s{sWO}, 0, s{sWO}"]
        for jn in range(7):
            vo = L16 if jn < 4 else L16B
            off = 1024 * (jn & 3)
            if slot < NREG_SLOTS:
                extras_wo.append(f"buffer_load_dwordx4 {r(woreg(slot,jn),4)}, v{vo}, s[20:23], s{sWO} offen offset:{off}")
            else:
                if jn in (0, 4):
                    extras_wo.append(f"s_add_u32 m0, s{sLW}, {K2_LWO + (slot-NREG_SLOTS)*7168 + (4096 if jn else 0)}")
                extras_wo.append(f"buffer_load_dwordx4 v{vo}, s[20:23], s{sWO} offen offset:{off} lds")
    A(f"v_and_b32 v{T0}, 7, v{LANE}")
    A(f"v_mul_u32_u24 v{T0}, 896, v{T0}")
    A(f"v_bfe_u32 v{T1}, v{LANE}, 3, 1")
    A(f"v_lshlrev_b32 v{T1}, 7, v{T1}")
    A(f"v_lshrrev_b32 v{EW}, 4, v{LANE}")
    A(f"v_lshl_add_u32 v{EW}, v{EW}, 3, v{T1}")
    A(f"v_add_u32 v{EV}, v{EW}, v{T0}")
    A(f"s_mul_i32 s{sEW}, s{sW}, 224")
    A(f"s_add_u32 s{sE}, s{sEW}, s{sROW}")

    def QK(u, mf):
        i, b = u >> 2, u & 3
        kb = KV + 16 * (i % 3) + 4 * mf
        sd = S[u & 1]
        c = "0" if mf == 0 else v(sd, 16)
        A(f"v_mfma_f32_32x32x16_bf16 {v(sd,16)}, {v(kb,4)}, {r(AQ+8*b+4*mf,4)}, {c}")

    def PV(u, m):
        i, b = u >> 2, u & 3
        vb = KV + 16 * (i % 3) + 8 + 4 * m
        o = Oreg(b)
        c = "0" if (i == 0 and m == 0) else r(o, 16)
        A(f"v_mfma_f32_32x32x16_bf16 {r(o,16)}, {v(vb,4)}, {v(P+4*m,4)}, {c}")

    stamp()
    QK(0, 0)
    QK(0, 1)
    stamp()
    nwo = len(extras_wo)
    WO_END = 56
    wo_done = 0
    lds_dma_last = None
    for u in range(64):
        sd = S[u & 1]
        if u in (16, 32, 48):
            stamp()

        def extra():
            nonlocal wo_done, lds_dma_last
            if extras_kv and extras_kv[0][0] <= u:
                A(extras_kv.pop(0)[1])
                return
            if extras_end and extras_end[0][0] <= u:
                A(extras_end.pop(0)[1])
                return
            target = min(nwo, (nwo * (u + 1) + WO_END - 1) // WO_END)
            if wo_done < target:
                x = extras_wo[wo_done]
                i_ = A(x)
                if x.endswith("lds"):
                    lds_dma_last = i_
                wo_done += 1

        for g in range(4):
            if g == 0:
                if u + 1 < 64:
                    QK(u + 1, 0)
            elif g == 1:
                if u > 0:
                    PV(u - 1, 1)
            elif g == 2:
                if u + 1 < 64:
                    QK(u + 1, 1)
            else:
                PV(u, 0)
            for e in range(4):
                rr = sd + 4 * g + e
                A(f"v_exp_f32 v{rr}, v{rr}")
                if e < 3:
                    extra()
            for c in range(2):
                A(f"v_cvt_pk_bf16_f32 v{P+2*g+c}, v{sd+4*g+2*c}, v{sd+4*g+2*c+1}")
    assert not extras_kv and not extras_end and wo_done == nwo, (len(extras_kv), len(extras_end), wo_done, nwo)
    PV(63, 1)
    stamp()

    for b in (1, 2, 3):
        A(f"s_add_u32 s{sT0}, s{sW}, {b}")
        A(f"s_and_b32 s{sT0}, s{sT0}, 3")
        A(f"s_mul_i32 s{sT0}, s{sT0}, 12288")
        A(f"s_add_u32 s{sT0}, s{sT0}, {K2_RED + (b-1)*4096}")
        A(f"v_add_u32 v{T0}, s{sT0}, v{L16}")
        for rg in range(4):
            A(f"ds_write_b128 v{T0}, {r(Oreg(b)+4*rg,4)} offset:{1024*rg}")
    A(f"v_add_u32 v{T1}, s{sLW}, v{L16}")
    A(f"s_mul_i32 s{sT0}, s{sW}, 12288")
    A(f"s_add_u32 s{sT0}, s{sT0}, {K2_RED}")
    A(f"v_add_u32 v{T0}, s{sT0}, v{L16}")
    A.wait(lgkm=0)
    A("s_barrier")
    stamp()
    RB = [S[0], S[1], KV]
    for sl in range(3):
        for rg in range(4):
            A(f"ds_read_b128 {v(RB[sl]+4*rg,4)}, v{T0} offset:{4096*sl+1024*rg}")
    A.wait_vm_id(lds_dma_last)
    lw = []
    for slot in range(NREG_SLOTS, 14):
        for jn in range(7):
            lw.append(f"ds_read_b128 {r(woreg(slot,jn),4)}, v{T1} offset:{K2_LWO+(slot-NREG_SLOTS)*7168+1024*jn}")
    for sl in range(3):
        for i in range(0, 16, 2):
            A(f"v_pk_add_f32 {v(O0+i,2)}, {v(O0+i,2)}, {v(RB[sl]+i,2)}")
    for x in lw:
        A(x)
    A(f"v_mov_b32 v{MISC4}, v{O0+12}")
    A(f"v_mov_b32 v{MISC4+1}, v{O0+12}")
    A(f"v_permlane32_swap_b32 v{MISC4}, v{MISC4+1}")
    A(f"v_bfe_u32 v{T0}, v{LANE}, 4, 1")
    A(f"v_mul_u32_u24 v{T0}, {OSTR}, v{T0}")
    A(f"v_rcp_f32 v{MISC4+2}, v{MISC4+1}")
    A(f"v_and_b32 v{T1}, 15, v{LANE}")
    A(f"v_mad_u32_u24 v{T0}, v{T1}, 56, v{T0}")
    A(f"v_lshrrev_b32 v{T1}, 5, v{LANE}")
    A(f"v_lshl_add_u32 v{T0}, v{T1}, 3, v{T0}")
    A(f"s_mul_i32 s{sT0}, s{sW}, {2*OSTR}")
    A(f"s_add_u32 s{sT0}, s{sT0}, {K2_OB}")
    A(f"v_add_u32 v{T0}, s{sT0}, v{T0}")
    A(f"v_cmp_le_f32 vcc, 0x21800000, v{MISC4+1}")
    A(f"s_mov_b64 s[{sT2}:{sT3}], vcc")
    A(f"v_cmp_ge_f32 vcc, 0x5d800000, v{MISC4+1}")
    for i in range(0, 16, 2):
        A(f"v_pk_mul_f32 {v(O0+i,2)}, {v(O0+i,2)}, {v(MISC4+2,2)} op_sel_hi:[1,0]")
        A(f"v_cvt_pk_bf16_f32 v{P+i//2}, v{O0+i}, v{O0+i+1}")
    A(f"s_and_b64 s[{sT2}:{sT3}], s[{sT2}:{sT3}], vcc")
    A(f"s_not_b64 s[{sT2}:{sT3}], s[{sT2}:{sT3}]")
    A(f"s_cselect_b32 s{sT2}, 1, 0")
    for a_ in range(3):
        A(f"ds_write_b64 v{T0}, {v(P+2*a_,2)} offset:{16*a_}")
        A(f"ds_write_b64 v{T0}, {v(P+2*a_,2)} offset:{16*a_+896}")
    A("s_mov_b32 exec_hi, 0")
    A(f"ds_write_b64 v{T0}, {v(P+6,2)} offset:48")
    A(f"ds_write_b64 v{T0}, {v(P+6,2)} offset:{48+896}")
    A("s_mov_b32 exec_hi, -1")
    A(f"s_lshl_b32 s{sT0}, s{sW}, 2")
    A(f"s_add_u32 s{sT0}, s{sT0}, {K2_FLG}")
    A(f"v_mov_b32 v{T1}, s{sT0}")
    A(f"v_mov_b32 v{MISC4}, s{sT2}")
    A(f"ds_write_b32 v{T1}, v{MISC4}")
    A(f"v_and_b32 v{T0}, 7, v{LANE}")
    A(f"v_mul_u32_u24 v{T0}, {OSTR}, v{T0}")
    A(f"v_lshrrev_b32 v{T1}, 4, v{LANE}")
    A(f"v_lshl_add_u32 v{T0}, v{T1}, 4, v{T0}")
    A(f"s_lshl_b32 s{sT0}, s{sR14}, 6")
    A(f"s_add_u32 s{sT0}, s{sT0}, {K2_OB}")
    A(f"v_add_u32 v{T0}, s{sT0}, v{T0}")
    A(f"v_mov_b32 v{T1}, {K2_FLG}")
    X32, W32 = S[0], S[1]
    for i in range(8):
        A(f"v_lshlrev_b32 v{X32+2*i}, 16, v{XR+i}")
        A(f"v_and_b32 v{X32+2*i+1}, 0xffff0000, v{XR+i}")
        A(f"v_lshlrev_b32 v{W32+2*i}, 16, v{WR+i}")
        A(f"v_and_b32 v{W32+2*i+1}, 0xffff0000, v{WR+i}")
    A.wait(lgkm=0)
    A("s_barrier")
    stamp()
    BF = [KV + 4 * i for i in range(4)] + [KV + 32 + 4 * i for i in range(4)]
    FL = XR
    A(f"ds_read_b128 {v(FL,4)}, v{T1}")
    for i in range(8):
        A(f"ds_read_b128 {v(BF[i],4)}, v{T0} offset:{64*i}")
    ACC = [O0, O0 + 4, O0 + 8, O0 + 12, P, P + 4, MISC4]
    A(f"v_or3_b32 v{FL}, v{FL}, v{FL+1}, v{FL+2}")
    A(f"v_or_b32 v{FL}, v{FL}, v{FL+3}")
    A(f"v_readfirstlane_b32 s{sT0}, v{FL}")
    A(f"s_andn2_b32 s{sT0}, s{sT0}, s{sPASS}")
    A(f"s_cbranch_scc1 L_{name}_fallback")
    st_fb = A.fork()
    for slot in range(14):
        for jn in range(7):
            c = "0" if slot == 0 else v(ACC[jn], 4)
            A(f"v_mfma_f32_16x16x32_bf16 {v(ACC[jn],4)}, {r(woreg(slot,jn),4)}, {v(BF[slot%8],4)}, {c}")
        if slot + 8 < 14:
            A(f"ds_read_b128 {v(BF[slot%8],4)}, v{T0} offset:{64*(slot+8)}")
    stamp()
    H32 = KV
    SP = KV + 32
    HP = KV + 40
    A(f"v_and_b32 v{T1}, 8, v{LANE}")
    A(f"v_cmp_ne_u32 vcc, 0, v{T1}")
    A(f"v_pk_add_f32 {v(SP+6,2)}, {v(W32,2)}, {v(W32+2,2)}")
    for k in (1, 2):
        A(f"v_pk_add_f32 {v(SP+6,2)}, {v(SP+6,2)}, {v(W32+4*k,2)}")
        A(f"v_pk_add_f32 {v(SP+6,2)}, {v(SP+6,2)}, {v(W32+4*k+2,2)}")
    for k in range(4):
        if k == 3:
            A("s_mov_b32 exec_lo, 0x00ff00ff")
            A("s_mov_b32 exec_hi, 0x00ff00ff")
            A(f"v_pk_add_f32 {v(SP+6,2)}, {v(SP+6,2)}, {v(W32+12,2)}")
            A(f"v_pk_add_f32 {v(SP+6,2)}, {v(SP+6,2)}, {v(W32+14,2)}")
        h = H32 + 4 * k
        if k < 3:
            for e in range(4):
                A(f"v_cndmask_b32 v{h+e}, v{ACC[k]+e}, v{ACC[k+4]+e}, vcc")
            src = h
        else:
            src = ACC[3]
        for e in (0, 2):
            A(f"v_pk_add_f32 {v(h+e,2)}, {v(src+e,2)}, {v(X32+4*k+e,2)}")
        for e in (0, 2):
            A(f"v_cvt_pk_bf16_f32 v{HP+2*k+e//2}, v{h+e}, v{h+e+1}")
            if k == 0 and e == 0:
                A(f"v_pk_mul_f32 {v(SP+2,2)}, {v(h,2)}, {v(h,2)}")
                A(f"v_pk_mul_f32 {v(SP+4,2)}, {v(h,2)}, {v(W32,2)}")
            else:
                if k == 0:
                    A(f"v_pk_add_f32 {v(SP,2)}, {v(h,2)}, {v(h+2,2)}")
                else:
                    A(f"v_pk_add_f32 {v(SP,2)}, {v(SP,2)}, {v(h+e,2)}")
                A(f"v_pk_fma_f32 {v(SP+2,2)}, {v(h+e,2)}, {v(h+e,2)}, {v(SP+2,2)}")
                A(f"v_pk_fma_f32 {v(SP+4,2)}, {v(h+e,2)}, {v(W32+4*k+e,2)}, {v(SP+4,2)}")
        if k == 0:
            A(f"s_add_u32 s{sT1}, s{sE}, 0x{WS_H:x}")
        A(f"buffer_store_dwordx2 {v(HP+2*k,2)}, v{EV}, s[12:15], s{sT1} offen offset:{32*k}")
    A("s_mov_b64 exec, -1")
    R4 = X32
    for i in range(4):
        A(f"v_add_f32 v{R4+i}, v{SP+2*i}, v{SP+2*i+1}")
    for i in range(4):
        A(f"v_add_f32_dpp v{R4+i}, v{R4+i}, v{R4+i} row_ror:8 row_mask:0xf bank_mask:0xf")
    for sw in ("v_permlane16_swap_b32", "v_permlane32_swap_b32"):
        for i in range(4):
            A(f"v_mov_b32 v{R4+4+i}, v{R4+i}")
        for i in range(4):
            A(f"{sw} v{R4+i}, v{R4+4+i}")
        for i in range(4):
            A(f"v_add_f32 v{R4+i}, v{R4+i}, v{R4+4+i}")
    A(f"v_and_b32 v{T0}, 7, v{LANE}")
    A(f"v_lshlrev_b32 v{T0}, 4, v{T0}")
    A(f"v_add_u32 v{T0}, {K2_ST}, v{T0}")
    A(f"s_lshl_b32 s{sT0}, s{sW}, 7")
    A(f"v_add_u32 v{T1}, s{sT0}, v{T0}")
    A(f"ds_write_b128 v{T1}, {v(R4,4)}")
    A.wait(lgkm=0)
    A("s_barrier")
    stamp()
    G = W32
    for w_ in range(4):
        A(f"ds_read_b128 {v(G+4*w_,4)}, v{T0} offset:{128*w_}")
    for e in (0, 2):
        A(f"v_pk_add_f32 {v(G+e,2)}, {v(G+e,2)}, {v(G+4+e,2)}")
        A(f"v_pk_add_f32 {v(G+8+e,2)}, {v(G+8+e,2)}, {v(G+12+e,2)}")
    for e in (0, 2):
        A(f"v_pk_add_f32 {v(G+e,2)}, {v(G+e,2)}, {v(G+8+e,2)}")
    M_, RS, NM, TT = G + 4, G + 7, G + 6, G + 5
    ln_stats(A, f"v{G}", f"v{G+1}", f"v{M_}", f"v{RS}", f"v{TT}")
    A(f"v_mul_f32_e64 v{NM}, -v{M_}, v{RS}")
    A(f"s_add_u32 s{sT1}, s{sE}, 0x{WS_HN:x}")
    HN32 = X32
    OP = SP
    for k in range(4):
        if k == 3:
            A("s_mov_b32 exec_lo, 0x00ff00ff")
            A("s_mov_b32 exec_hi, 0x00ff00ff")
        h = H32 + 4 * k
        hn = HN32 + 4 * k
        for e in (0, 2):
            A(f"v_pk_fma_f32 {v(hn+e,2)}, {v(h+e,2)}, {v(NM,2)}, {v(NM,2)} op_sel:[0,1,0] op_sel_hi:[1,1,0]")
        for e in (0, 2):
            A(f"v_pk_add_f32 {v(h+e,2)}, {v(h+e,2)}, {v(hn+e,2)}")
            A(f"v_cvt_pk_bf16_f32 v{HP+2*k+e//2}, v{hn+e}, v{hn+e+1}")
        for e in (0, 2):
            A(f"v_cvt_pk_bf16_f32 v{OP+2*k+e//2}, v{h+e}, v{h+e+1}")
        A(f"buffer_store_dwordx2 {v(OP+2*k,2)}, v{EV}, s[28:31], s{sE} offen offset:{32*k}")
        A(f"buffer_store_dwordx2 {v(HP+2*k,2)}, v{EV}, s[12:15], s{sT1} offen offset:{32*k}")
    stamp_store()
    A(f"s_cmp_lg_u32 s{sW}, 3")
    A(f"s_cbranch_scc1 L_{name}_end")
    A("s_mov_b32 exec_lo, 0xff")
    A("s_mov_b32 exec_hi, 0")
    A(f"v_mul_f32 v{G+3}, v{G+3}, v{NM}")
    A(f"v_fma_f32 v{G+2}, v{G+2}, v{RS}, v{G+3}")
    A(f"v_ashrrev_i32 v{G+3}, 31, v{G+2}")
    A(f"v_or_b32 v{G+3}, 0x80000000, v{G+3}")
    A(f"v_xor_b32 v{G+2}, v{G+2}, v{G+3}")
    A(f"v_and_b32 v{G+2}, 0xfffff800, v{G+2}")
    A(f"s_lshl_b32 s{sT0}, s{sG}, 3")
    A(f"v_add_u32 v{G+3}, s{sT0}, v{LANE}")
    A(f"v_or_b32 v{G+2}, v{G+2}, v{G+3}")
    a1, a2, b1, c = G + 2, G + 3, G, G + 1
    A(f"v_mov_b32_dpp v{b1}, v{a1} quad_perm:[1,0,3,2] row_mask:0xf bank_mask:0xf")
    A(f"v_min_u32 v{a2}, v{a1}, v{b1}")
    A(f"v_max_u32 v{a1}, v{a1}, v{b1}")
    for dpp in ("quad_perm:[2,3,0,1]", "row_half_mirror"):
        A(f"v_mov_b32_dpp v{b1}, v{a1} {dpp} row_mask:0xf bank_mask:0xf")
        A(f"v_max_u32_dpp v{c}, v{a2}, v{a2} {dpp} row_mask:0xf bank_mask:0xf")
        A(f"v_med3_u32 v{a2}, v{a1}, v{b1}, v{c}")
        A(f"v_max_u32 v{a1}, v{a1}, v{b1}")
    A(f"s_add_u32 s{sT0}, s{sT0}, 0x{WS_KEY:x}")
    A("s_mov_b32 exec_lo, 1")
    A(f"buffer_store_dwordx2 {v(a1,2)}, off, s[12:15], s{sT0}")
    A("s_endpgm")

    A.restore(st_fb)
    A.label(f"L_{name}_fallback")
    A.drain()
    A(f"v_mov_b32 v{T0}, 0")
    for b in range(4):
        A(f"v_accvgpr_write_b32 {r(AQ+8*b+6)}, v{T0}")
        A(f"v_accvgpr_write_b32 {r(AQ+8*b+7)}, v{T0}")
    load_q()
    MXR = P
    for b in range(4):
        A(f"v_mov_b32 v{MXR+b}, 0xff800000")
    A(f"s_mov_b32 s{sKV}, 0")
    A.drain()
    A.label(f"L_{name}_fbloop")
    for x in kv_loads(0, 0):
        A(x)
    for b in range(4):
        sd = S[b & 1]
        A(f"v_mfma_f32_32x32x16_bf16 {v(sd,16)}, {v(KV,4)}, {r(AQ+8*b,4)}, 0")
        A(f"v_mfma_f32_32x32x16_bf16 {v(sd,16)}, {v(KV+4,4)}, {r(AQ+8*b+4,4)}, {v(sd,16)}")
        for i in range(0, 16, 2):
            A(f"v_max3_f32 v{MXR+b}, v{MXR+b}, v{sd+i}, v{sd+i+1}")
    A(f"s_add_u32 s{sKV}, s{sKV}, 4096")
    A(f"s_cmp_lt_u32 s{sKV}, 65536")
    A.drain()
    A(f"s_cbranch_scc1 L_{name}_fbloop")
    for b in range(4):
        A(f"v_mov_b32 v{MXR+4+b}, v{MXR+b}")
    for b in range(4):
        A(f"v_permlane32_swap_b32 v{MXR+b}, v{MXR+4+b}")
    for b in range(4):
        A(f"v_max_f32 v{MXR+b}, v{MXR+b}, v{MXR+4+b}")
    A("s_barrier")
    A(f"v_and_b32 v{T0}, 31, v{LANE}")
    A(f"v_lshlrev_b32 v{T0}, 2, v{T0}")
    A(f"v_add_u32 v{T0}, {K2_MX}, v{T0}")
    for b in range(4):
        A(f"s_add_u32 s{sT0}, s{sW}, {b}")
        A(f"s_and_b32 s{sT0}, s{sT0}, 3")
        A(f"s_lshl_b32 s{sT0}, s{sT0}, 7")
        A(f"v_add_u32 v{MXR+4+b}, s{sT0}, v{T0}")
        A(f"s_lshl_b32 s{sT1}, s{sW}, 9")
        A(f"v_add_u32 v{T1}, s{sT1}, v{MXR+4+b}")
        A(f"ds_write_b32 v{T1}, v{MXR+b}")
    A.wait(lgkm=0)
    A("s_barrier")
    for b in range(4):
        for w_ in range(4):
            A(f"ds_read_b32 v{S[0]+4*b+w_}, v{MXR+4+b} offset:{512*w_}")
    for b in range(4):
        m = S[0] + 4 * b
        A(f"v_max3_f32 v{m}, v{m}, v{m+1}, v{m+2}")
        A(f"v_max_f32 v{m}, v{m}, v{m+3}")
        A(f"v_sub_f32 v{m}, 0, v{m}")
        bf16r(A, f"v{m+1}", f"v{m}")
        A(f"v_sub_f32 v{m}, v{m}, v{m+1}")
        bf16r(A, f"v{m+2}", f"v{m}")
        A(f"v_sub_f32 v{m}, v{m}, v{m+2}")
        A(f"v_cvt_pk_bf16_f32 v{PZ+2*b}, v{m+1}, v{m+2}")
        A(f"v_cvt_pk_bf16_f32 v{PZ+2*b+1}, v{m}, 0")
    A(f"s_mov_b32 s{sPASS}, -1")
    A.drain()
    A("s_barrier")
    A(f"s_branch L_{name}_start")
    A.label(f"L_{name}_end")
    A("s_endpgm")
    return kdesc(name, 512, 256)
```

```python
from asmlib import *
from layout import *
from k1 import bf16r

K3_WGS = 112
K3_GU = 0
K3_DN = 28672
K3_EX = 45056
K3_LDS = 49152
PT = 14336 + 256
LOG2E = 0x3fb8aa3b


def top2_reduce(A, a1, a2, b1, c):
    for dpp in ("quad_perm:[1,0,3,2]", "quad_perm:[2,3,0,1]", "row_half_mirror", "row_mirror"):
        A(f"v_mov_b32_dpp v{b1}, v{a1} {dpp} row_mask:0xf bank_mask:0xf")
        A(f"v_max_u32_dpp v{c}, v{a2}, v{a2} {dpp} row_mask:0xf bank_mask:0xf")
        A(f"v_med3_u32 v{a2}, v{a1}, v{b1}, v{c}")
        A(f"v_max_u32 v{a1}, v{a1}, v{b1}")
    for sw in ("v_permlane16_swap_b32", "v_permlane32_swap_b32"):
        A(f"v_mov_b32 v{b1}, v{a1}")
        A(f"v_mov_b32 v{c}, v{a2}")
        A(f"{sw} v{a1}, v{b1}")
        A(f"{sw} v{a2}, v{c}")
        A(f"v_max_u32 v{c}, v{a2}, v{c}")
        A(f"v_med3_u32 v{a2}, v{a1}, v{b1}, v{c}")
        A(f"v_max_u32 v{a1}, v{a1}, v{b1}")


def gen_k3(A, name):
    A.reset()
    A.raw(kentry(name))
    LANE, T0, T1, T2, T3 = 1, 2, 3, 4, 5
    GO, DO, GA, DA = 6, 7, 8, 9
    KY = 12
    HB = 20
    WF = 48
    DF = 76
    ACC = 92
    EX = 96
    Y = 112
    XH = 140
    sW, sSL = 36, 37
    sT0, sT1, sT2, sT3 = 38, 39, 40, 41
    sG, sM = 42, 43
    A(f"s_cmp_ge_u32 s2, {K3_WGS}")
    A(f"s_cbranch_scc1 L_{name}_end")
    A("s_load_dwordx4 s[4:7], s[0:1], 56")
    A("s_load_dwordx2 s[8:9], s[0:1], 72")
    A("s_load_dwordx2 s[10:11], s[0:1], 96")
    A(f"v_and_b32 v{LANE}, 63, v0")
    A(f"v_lshrrev_b32 v{T0}, 6, v0")
    A(f"v_readfirstlane_b32 s{sW}, v{T0}")
    A(f"s_and_b32 s{sT0}, s2, 7")
    A(f"s_mul_i32 s{sT0}, s{sT0}, 14")
    A(f"s_lshr_b32 s{sT1}, s2, 3")
    A(f"s_add_u32 s{sSL}, s{sT0}, s{sT1}")
    A(f"v_lshrrev_b32 v{T0}, 1, v{LANE}")
    A(f"v_mul_u32_u24 v{T0}, 3584, v{T0}")
    A(f"v_and_b32 v{T1}, 1, v{LANE}")
    A(f"v_lshl_add_u32 v{GO}, v{T1}, 4, v{T0}")
    A(f"v_mul_u32_u24 v{T0}, 37, v{LANE}")
    A(f"v_lshrrev_b32 v{T0}, 9, v{T0}")
    A(f"v_mul_u32_u24 v{T1}, 672, v{T0}")
    A(f"v_lshl_add_u32 v{DO}, v{LANE}, 4, v{T1}")
    A(f"v_lshlrev_b32 v{T3}, 4, v{LANE}")
    A(f"s_mov_b32 s14, 0x{WS_SIZE:x}\ns_mov_b32 s15, 0x20000")
    A("s_mov_b32 s18, 1605632\ns_mov_b32 s19, 0x20000")
    A("s_mov_b32 s22, 1605632\ns_mov_b32 s23, 0x20000")
    A(f"s_lshr_b32 s{sT0}, s{sW}, 1")
    A(f"s_mul_i32 s{sG}, s{sT0}, {224*3584}")
    A(f"s_lshl_b32 s{sT1}, s{sSL}, 5")
    A(f"s_add_u32 s{sG}, s{sG}, s{sT1}")
    A(f"s_mul_i32 s{sM}, s{sW}, 7168")
    A(f"s_mov_b32 s{sT2}, 0x{WS_KEY:x}")
    A(f"s_bitcmp1_b32 s{sW}, 0")
    A("s_cselect_b32 s16, s6, s4")
    A("s_cselect_b32 s17, s7, s5")
    A("s_mov_b32 s12, s10\ns_mov_b32 s13, s11")
    A("s_mov_b32 s20, s8\ns_mov_b32 s21, s9")
    A(f"buffer_load_dwordx4 {v(KY,4)}, v{T3}, s[12:15], s{sT2} offen")
    A(f"buffer_load_dwordx4 {v(KY+4,4)}, v{T3}, s[12:15], s{sT2} offen offset:1024")
    gid = []
    for st in range(7):
        A(f"s_add_u32 m0, s{sM}, {K3_GU + 1024*st}")
        gid.append(A(f"buffer_load_dwordx4 v{GO}, s[16:19], s{sG} offen lds"))
        if st < 6:
            A(f"s_add_u32 s{sG}, s{sG}, {32*3584}")
    A(f"s_mul_i32 s{sG}, s{sSL}, 14336")
    A(f"s_mul_i32 s{sT0}, s{sW}, 224")
    A(f"s_add_u32 s{sG}, s{sG}, s{sT0}")
    A(f"s_lshl_b32 s{sT1}, s{sW}, 12")
    A("s_mov_b32 exec_hi, 0x00ffffff")
    for g in range(4):
        A(f"s_add_u32 m0, s{sT1}, {K3_DN + 1024*g - (3584*g if False else 0)}")
        did = A(f"buffer_load_dwordx4 v{DO}, s[20:23], s{sG} offen lds")
        if g < 3:
            A(f"s_add_u32 s{sG}, s{sG}, 3584")
    A("s_mov_b32 exec_hi, -1")
    A(f"v_lshrrev_b32 v{T0}, 4, v{LANE}")
    A(f"v_bfe_u32 v{T1}, v{LANE}, 2, 2")
    A(f"v_and_b32 v{T2}, 3, v{LANE}")
    A(f"v_lshl_add_u32 v{GA}, v{T0}, 3, v{T1}")
    A(f"v_lshlrev_b32 v{GA}, 5, v{GA}")
    A(f"v_lshl_add_u32 v{GA}, v{T2}, 3, v{GA}")
    A(f"v_add_u32 v{GA}, s{sM}, v{GA}")
    A(f"v_mul_u32_u24 v{DA}, 224, v{T1}")
    A(f"v_lshl_add_u32 v{DA}, v{T0}, 10, v{DA}")
    A(f"v_lshl_add_u32 v{DA}, v{T2}, 3, v{DA}")
    A(f"v_add_u32 v{DA}, s{sT1}, v{DA}")
    a1, a2, b1, c = KY, KY + 1, T1, T2
    for i in (2, 4, 6):
        A(f"v_max_u32 v{c}, v{a2}, v{KY+i+1}")
        A(f"v_med3_u32 v{a2}, v{a1}, v{KY+i}, v{c}")
        A(f"v_max_u32 v{a1}, v{a1}, v{KY+i}")
    top2_reduce(A, a1, a2, b1, c)
    A("s_mov_b32 vcc_lo, 0xaaaaaaaa")
    A("s_mov_b32 vcc_hi, 0xaaaaaaaa")
    A(f"v_cndmask_b32 v{KY+2}, v{a1}, v{a2}, vcc")
    A(f"v_and_b32 v{KY+3}, 0x7ff, v{KY+2}")
    A(f"v_mul_u32_u24 v{KY+4}, 896, v{KY+3}")
    A(f"v_lshl_add_u32 v{KY+5}, v{T0}, 4, v{KY+4}")
    A(f"s_lshr_b32 s{sT0}, s{sW}, 1")
    A(f"s_mul_i32 s{sT0}, s{sT0}, 448")
    A(f"s_add_u32 s{sT0}, s{sT0}, 0x{WS_HN:x}")
    for st in range(7):
        A(f"buffer_load_dwordx4 {v(HB+4*st,4)}, v{KY+5}, s[12:15], s{sT0} offen offset:{64*st}")
    A(f"s_cmp_lt_u32 s{sSL}, 28")
    A(f"s_cselect_b32 s{sT3}, 1, 0")
    A(f"s_cmp_eq_u32 s{sW}, 0")
    A(f"s_cselect_b32 s{sT3}, s{sT3}, 0")
    A(f"s_cmp_eq_u32 s{sT3}, 0")
    A(f"s_cbranch_scc1 L_{name}_nox")
    tok = A.cond_begin()
    A(f"v_lshl_add_u32 v{KY+6}, v{T0}, 3, v{KY+4}")
    A(f"s_lshl_b32 s{sT0}, s{sSL}, 5")
    A(f"s_add_u32 s{sT2}, s{sT0}, 0x{WS_HN:x}")
    A(f"buffer_load_dwordx2 {v(XH,2)}, v{KY+6}, s[12:15], s{sT2} offen")
    A(f"s_add_u32 s{sT2}, s{sT0}, 0x{WS_H:x}")
    A(f"buffer_load_dwordx2 {v(XH+2,2)}, v{KY+6}, s[12:15], s{sT2} offen")
    A.cond_end(tok)
    A.label(f"L_{name}_nox")
    for st in range(7):
        A.wait_vm_id(gid[st])
        A(f"ds_read_b64_tr_b16 {v(WF+4*st,2)}, v{GA} offset:{K3_GU+1024*st}")
        A(f"ds_read_b64_tr_b16 {v(WF+4*st+2,2)}, v{GA} offset:{K3_GU+1024*st+128}")
    A.wait_vm_id(did)
    for t in range(7):
        A(f"ds_read_b64_tr_b16 {v(DF+2*t,2)}, v{DA} offset:{K3_DN+32*t}")
    A(f"v_and_b32 v{T1}, 1, v{LANE}")
    A(f"v_lshlrev_b32 v{T1}, 6, v{T1}")
    A(f"v_lshl_add_u32 v{T1}, v{T0}, 4, v{T1}")
    A(f"s_mul_i32 s{sG}, s{sW}, {7*PT}")
    A(f"s_lshl_b32 s{sT0}, s{sSL}, 7")
    A(f"s_add_u32 s{sG}, s{sG}, s{sT0}")
    A(f"s_add_u32 s{sG}, s{sG}, 0x{WS_PART:x}")
    A(f"s_lshl_b32 s{sT0}, s{sW}, 10")
    A(f"s_add_u32 s{sT0}, s{sT0}, {K3_EX}")
    A(f"v_add_u32 v{T2}, s{sT0}, v{T3}")
    for st in range(7):
        cc = "0" if st == 0 else v(ACC, 4)
        A(f"v_mfma_f32_16x16x32_bf16 {v(ACC,4)}, {v(WF+4*st,4)}, {v(HB+4*st,4)}, {cc}")
    A(f"ds_write_b128 v{T2}, {v(ACC,4)}")
    A.wait(lgkm=0)
    A("s_barrier")
    for w_ in range(4):
        A(f"ds_read_b128 {v(EX+4*w_,4)}, v{T3} offset:{K3_EX+1024*w_}")
    G_, U_ = EX, EX + 4
    for e in (0, 2):
        A(f"v_pk_add_f32 {v(G_+e,2)}, {v(G_+e,2)}, {v(EX+8+e,2)}")
        A(f"v_pk_add_f32 {v(U_+e,2)}, {v(U_+e,2)}, {v(EX+12+e,2)}")
    E_ = EX + 8
    for i in range(4):
        bf16r(A, f"v{G_+i}", f"v{G_+i}")
    for i in range(4):
        A(f"v_mul_f32 v{E_+i}, 0xbfb8aa3b, v{G_+i}")
    for i in range(4):
        A(f"v_exp_f32 v{E_+i}, v{E_+i}")
    for i in range(4):
        bf16r(A, f"v{U_+i}", f"v{U_+i}")
    for i in range(4):
        A(f"v_add_f32 v{E_+i}, 1.0, v{E_+i}")
    for i in range(4):
        A(f"v_rcp_f32 v{E_+i}, v{E_+i}")
    for i in range(4):
        A(f"v_mul_f32 v{G_+i}, v{G_+i}, v{E_+i}")
    for i in range(4):
        bf16r(A, f"v{G_+i}", f"v{G_+i}")
    for i in range(4):
        A(f"v_mul_f32 v{G_+i}, v{G_+i}, v{U_+i}")
    A(f"v_cvt_pk_bf16_f32 v{E_}, v{G_}, v{G_+1}")
    A(f"v_cvt_pk_bf16_f32 v{E_+1}, v{G_+2}, v{G_+3}")
    for t in range(7):
        A(f"v_mfma_f32_16x16x16_bf16 {v(Y+4*t,4)}, {v(DF+2*t,2)}, {v(E_,2)}, 0")
    A("s_mov_b32 exec_lo, 0x00030003")
    A("s_mov_b32 exec_hi, 0x00030003")
    for t in range(7):
        A(f"buffer_store_dwordx4 {v(Y+4*t,4)}, v{T1}, s[12:15], s{sG} offen")
        if t < 6:
            A(f"s_add_u32 s{sG}, s{sG}, {PT}")
    A(f"s_cmp_eq_u32 s{sT3}, 0")
    A(f"s_cbranch_scc1 L_{name}_end")
    A(f"s_mul_i32 s{sG}, s{sSL}, {PT}")
    A(f"s_add_u32 s{sG}, s{sG}, 0x{WS_PART+14336:x}")
    for j in range(2):
        A(f"v_lshlrev_b32 v{EX+4*j}, 16, v{XH+2*j}")
        A(f"v_and_b32 v{EX+4*j+1}, 0xffff0000, v{XH+2*j}")
        A(f"v_lshlrev_b32 v{EX+4*j+2}, 16, v{XH+2*j+1}")
        A(f"v_and_b32 v{EX+4*j+3}, 0xffff0000, v{XH+2*j+1}")
        A(f"buffer_store_dwordx4 {v(EX+4*j,4)}, v{T1}, s[12:15], s{sG} offen offset:{128*j}")
    A("s_mov_b32 exec_lo, 3")
    A("s_mov_b32 exec_hi, 0")
    A(f"v_lshlrev_b32 v{T2}, 2, v{LANE}")
    A(f"s_lshl_b32 s{sT0}, s{sSL}, 3")
    A(f"s_add_u32 s{sT0}, s{sT0}, 0x{WS_SEL:x}")
    A(f"buffer_store_dword v{KY+2}, v{T2}, s[12:15], s{sT0} offen")
    A.label(f"L_{name}_end")
    A("s_endpgm")
    return kdesc(name, 144, 144)


def gen_k4(A, name):
    A.reset()
    A.raw(kentry(name))
    T0, T1, T2, T3 = 1, 2, 3, 4
    KEY = 5
    HN, H = 8, 12
    PB = 16
    A("s_cmp_ge_u32 s2, 28")
    A(f"s_cbranch_scc1 L_{name}_end")
    A("s_load_dwordx2 s[8:9], s[0:1], 80")
    A("s_load_dwordx2 s[10:11], s[0:1], 96")
    A(f"v_lshlrev_b32 v{T0}, 4, v0")
    A(f"v_and_b32 v{T1}, 0x70, v{T0}")
    A(f"v_bfe_u32 v{T2}, v0, 2, 1")
    A(f"v_lshlrev_b32 v{T2}, 2, v{T2}")
    A(f"s_mov_b32 s14, 0x{WS_SIZE:x}\ns_mov_b32 s15, 0x20000")
    A("s_mov_b32 s18, 1835008\ns_mov_b32 s19, 0x20000")
    A(f"s_mul_i32 s20, s2, {PT}")
    A(f"s_add_u32 s20, s20, 0x{WS_PART:x}")
    A(f"s_add_u32 s21, s20, 4096")
    A(f"s_add_u32 s22, s20, 8192")
    A(f"s_add_u32 s23, s20, 12288")
    A(f"s_lshl_b32 s24, s2, 3")
    A(f"s_add_u32 s24, s24, 0x{WS_SEL:x}")
    A("s_mov_b32 s12, s10\ns_mov_b32 s13, s11")
    A("s_mov_b32 s16, s8\ns_mov_b32 s17, s9")
    A(f"buffer_load_dword v{KEY}, v{T2}, s[12:15], s24 offen")
    for i in range(14):
        A(f"buffer_load_dwordx4 {v(PB+4*i,4)}, v{T0}, s[12:15], s{20+i//4} offen offset:{1024*(i%4)}")
    A(f"buffer_load_dwordx4 {v(HN,4)}, v{T1}, s[12:15], s23 offen offset:2048")
    A(f"buffer_load_dwordx4 {v(H,4)}, v{T1}, s[12:15], s23 offen offset:{2048+128}")
    A(f"v_and_b32 v{T3}, 0x7ff, v{KEY}")
    A(f"v_and_b32 v{KEY}, 0xfffff800, v{KEY}")
    A(f"v_ashrrev_i32 v{T2}, 31, v{KEY}")
    A(f"v_not_b32 v{T2}, v{T2}")
    A(f"v_or_b32 v{T2}, 0x80000000, v{T2}")
    A(f"v_xor_b32 v{KEY}, v{KEY}, v{T2}")
    bf16r(A, f"v{KEY}", f"v{KEY}")
    A(f"v_mul_f32 v{KEY}, 0xbfb8aa3b, v{KEY}")
    A(f"v_exp_f32 v{KEY}, v{KEY}")
    A(f"v_mul_u32_u24 v{T3}, 896, v{T3}")
    A(f"v_add_f32 v{KEY}, 1.0, v{KEY}")
    A(f"v_rcp_f32 v{KEY}, v{KEY}")
    A(f"v_and_b32 v{T2}, 3, v0")
    A(f"v_lshl_add_u32 v{T3}, v{T2}, 3, v{T3}")
    bf16r(A, f"v{KEY}", f"v{KEY}")
    A(f"s_lshl_b32 s24, s2, 5")
    n = 14
    idx = list(range(14))
    while len(idx) > 1:
        nxt = []
        for j in range(0, len(idx) - 1, 2):
            x, y = PB + 4 * idx[j], PB + 4 * idx[j + 1]
            A(f"v_pk_add_f32 {v(x,2)}, {v(x,2)}, {v(y,2)}")
            A(f"v_pk_add_f32 {v(x+2,2)}, {v(x+2,2)}, {v(y+2,2)}")
            nxt.append(idx[j])
        if len(idx) & 1:
            nxt.append(idx[-1])
        idx = nxt
    R = PB
    for i in range(4):
        A(f"v_add_f32_dpp v{R+i}, v{R+i}, v{R+i} row_ror:8 row_mask:0xf bank_mask:0xf")
    for sw in ("v_permlane16_swap_b32", "v_permlane32_swap_b32"):
        for i in range(4):
            A(f"v_mov_b32 v{R+4+i}, v{R+i}")
        for i in range(4):
            A(f"{sw} v{R+i}, v{R+4+i}")
        for i in range(4):
            A(f"v_add_f32 v{R+i}, v{R+i}, v{R+4+i}")
    for i in range(4):
        bf16r(A, f"v{R+i}", f"v{R+i}")
    for i in range(4):
        A(f"v_mul_f32 v{R+i}, v{R+i}, v{KEY}")
    for i in range(4):
        bf16r(A, f"v{R+i}", f"v{R+i}")
    for i in range(4):
        A(f"v_add_f32 v{R+i}, v{R+i}, v{HN+i}")
    for i in range(4):
        bf16r(A, f"v{R+i}", f"v{R+i}")
    for i in range(4):
        A(f"v_add_f32 v{R+i}, v{R+i}, v{H+i}")
    A(f"v_cvt_pk_bf16_f32 v{R+4}, v{R}, v{R+1}")
    A(f"v_cvt_pk_bf16_f32 v{R+5}, v{R+2}, v{R+3}")
    A("s_mov_b32 exec_lo, 0xff")
    A("s_mov_b32 exec_hi, 0")
    A(f"buffer_store_dwordx2 {v(R+4,2)}, v{T3}, s[16:19], s24 offen")
    A.label(f"L_{name}_end")
    A("s_endpgm")
    return kdesc(name, 72, 72)
```

```python
WS_Q = 0x000000
WS_KV = 0x200000
WS_WOF = 0x240000
WS_H = 0x300000
WS_HN = 0x500000
WS_KEY = 0x700000
WS_PART = 0x710000
WS_SEL = 0x778000
WS_SIZE = 0x800000
NAME = "sequential_preLN__grouped_kv_mqa__moe_arch_mod__prompt"
WS_DBG = 0x780000
```

```python
import sys, os
from asmlib import *
from layout import *
import k1
def gen_empty(A, name):
    A.reset()
    A.raw(kentry(name))
    A("s_endpgm")
    return kdesc(name, 8, 8)
def build(which=("k1",), out="out.s"):
    A = Asm()
    hdr = []
    descs = []
    A.raw('.amdgcn_target "amdgcn-amd-amdhsa--gfx950"\n.text')
    for w in which:
        if w == "k1":
            descs.append(k1.gen_k1(A, "k1_kernel")); hdr.append(f"; @launch kernel=k1_kernel grid=(256,1,1) block=(256,1,1) lds={k1.K1_LDS}")
        elif w == "k2":
            import k2
            descs.append(k2.gen_k2(A, "k2_kernel", dbg_time=bool(os.environ.get("DBGT")))); hdr.append(f"; @launch kernel=k2_kernel grid=(256,1,1) block=(256,1,1) lds={k2.K2_LDS}")
        elif w == "k3":
            import k3
            descs.append(k3.gen_k3(A, "k3_kernel")); hdr.append(f"; @launch kernel=k3_kernel grid=({k3.K3_WGS},1,1) block=(256,1,1) lds={k3.K3_LDS}")
        elif w == "k4":
            import k3
            descs.append(k3.gen_k4(A, "k4_kernel")); hdr.append(f"; @launch kernel=k4_kernel grid=(28,1,1) block=(64,1,1) lds=0")
        elif w.startswith("e"):
            descs.append(gen_empty(A, w + "_kernel")); hdr.append(f"; @launch kernel={w}_kernel grid=(256,1,1) block=(256,1,1) lds=0")
    txt = "\n".join(hdr) + "\n" + A.text() + '.section .rodata,"a"\n' + "".join(descs)
    open(out, "w").write(txt)
    print("nops inserted:", A.nnop, "lines:", len(A.lines))
if __name__ == "__main__":
    build(tuple(sys.argv[1].split(",")), sys.argv[2] if len(sys.argv) > 2 else "out.s")
```

```python
import sys, os
from asmlib import *
from layout import *
import k1
def gen_empty(A, name):
    A.reset()
    A.raw(kentry(name))
    A("s_endpgm")
    return kdesc(name, 8, 8)
def build(which=("k1",), out="out.s"):
    A = Asm()
    if os.environ.get("TL"):
        A.tl = True
    hdr = []
    descs = []
    A.raw('.amdgcn_target "amdgcn-amd-amdhsa--gfx950"\n.text')
    seen = {}
    for w in which:
        if w in seen:
            hdr.append(hdr[seen[w]])
            continue
        seen[w] = len(hdr)
        if w == "k1":
            descs.append(k1.gen_k1(A, "k1_kernel")); hdr.append(f"; @launch kernel=k1_kernel grid=(256,1,1) block=(256,1,1) lds={k1.K1_LDS}")
        elif w == "k2":
            import k2
            descs.append(k2.gen_k2(A, "k2_kernel", dbg_time=bool(os.environ.get("DBGT")))); hdr.append(f"; @launch kernel=k2_kernel grid=(256,1,1) block=(256,1,1) lds={k2.K2_LDS}")
        elif w == "k3":
            import k3
            descs.append(k3.gen_k3(A, "k3_kernel")); hdr.append(f"; @launch kernel=k3_kernel grid=({k3.K3_WGS},1,1) block=(256,1,1) lds={k3.K3_LDS}")
        elif w == "k4":
            import k3
            descs.append(k3.gen_k4(A, "k4_kernel")); hdr.append(f"; @launch kernel=k4_kernel grid=(28,1,1) block=(64,1,1) lds=0")
        elif w.startswith("e"):
            descs.append(gen_empty(A, w + "_kernel")); hdr.append(f"; @launch kernel={w}_kernel grid=(256,1,1) block=(256,1,1) lds=0")
    txt = "\n".join(hdr) + "\n" + A.text() + '.section .rodata,"a"\n' + "".join(descs)
    open(out, "w").write(txt)
    print("nops inserted:", A.nnop, "lines:", len(A.lines))
if __name__ == "__main__":
    build(tuple(sys.argv[1].split(",")), sys.argv[2] if len(sys.argv) > 2 else "out.s")
```

```python
import re, copy

TRANS = ("v_exp_f32", "v_log_f32", "v_rcp_f32", "v_rsq_f32", "v_sqrt_f32", "v_sin_f32", "v_cos_f32",
         "v_exp_f16", "v_rcp_f16", "v_rcp_iflag_f32")
REG_RE = re.compile(r"^(-?\|?)([vas])(\d+)\|?$")
RNG_RE = re.compile(r"^(-?\|?)([vas])\[(\d+):(\d+)\]\|?$")


def regs_of(tok):
    tok = tok.strip()
    if tok in ("vcc",):
        return [("s", 106), ("s", 107)]
    if tok == "vcc_lo":
        return [("s", 106)]
    if tok == "vcc_hi":
        return [("s", 107)]
    if tok == "exec":
        return [("x", 0), ("x", 1)]
    if tok == "exec_lo":
        return [("x", 0)]
    if tok == "exec_hi":
        return [("x", 1)]
    if tok == "m0":
        return [("m", 0)]
    m = REG_RE.match(tok)
    if m:
        return [(m.group(2), int(m.group(3)))]
    m = RNG_RE.match(tok)
    if m:
        return [(m.group(2), i) for i in range(int(m.group(3)), int(m.group(4)) + 1)]
    return []


def split_ops(s):
    out, depth, cur = [], 0, ""
    for ch in s:
        if ch == "[":
            depth += 1
        elif ch == "]":
            depth -= 1
        if ch == "," and depth == 0:
            out.append(cur.strip())
            cur = ""
        else:
            cur += ch
    if cur.strip():
        out.append(cur.strip())
    return out


class State:
    def __init__(self):
        self.pos = 0
        self.wr = {}
        self.mfma_c = {}
        self.st_data = {}
        self.sgpr_valu = {}
        self.m0 = -100
        self.vmq = []
        self.lgq = []
        self.nid = 0


class Asm:
    def __init__(self):
        self.lines = []
        self.st = State()
        self.nnop = 0
        self.maybe = False

    def raw(self, s):
        self.lines.append(s)

    def label(self, name):
        self.lines.append(name + ":")

    def fork(self):
        return copy.deepcopy(self.st)

    def restore(self, st):
        self.st = copy.deepcopy(st)

    def cond_begin(self):
        self.maybe = True
        return (self.st.pos, list(self.st.vmq), list(self.st.lgq))

    def cond_end(self, tok):
        st = self.st
        pos, vmq, lgq = tok
        self.maybe = False
        old = {e[0] for e in lgq}
        assert all(e[0] in old for e in st.lgq), "cond block leaves LDS ops pending"
        st.lgq = lgq
        oldv = {e[0] for e in vmq}
        st.vmq = vmq + [e for e in st.vmq if e[0] not in oldv]
        st.pos = pos
        lim = pos - 1
        st.wr = {k: (min(x[0], lim),) + tuple(x[1:]) for k, x in st.wr.items()}
        st.mfma_c = {k: (min(x[0], lim), x[1]) for k, x in st.mfma_c.items()}
        st.st_data = {k: min(x, lim) for k, x in st.st_data.items()}
        st.sgpr_valu = {k: min(x, lim) for k, x in st.sgpr_valu.items()}
        st.m0 = min(st.m0, lim)

    def reset(self):
        self.st = State()

    def nop(self, n):
        while n > 0:
            k = min(n, 16)
            self.lines.append(f"s_nop {k-1}")
            self.st.pos += k
            self.nnop += 1
            n -= k

    def _vm_after(self, k):
        return sum(1 for e in self.st.vmq[k + 1:] if not e[2])

    def wait(self, vm=None, lgkm=None):
        st = self.st
        parts = []
        if vm is not None:
            vm = min(vm, 63)
            if len(st.vmq) > vm:
                cnt, k = 0, len(st.vmq)
                while k > 0 and cnt < vm:
                    k -= 1
                    if not st.vmq[k][2]:
                        cnt += 1
                if k > 0:
                    st.vmq = st.vmq[k:]
                    parts.append(f"vmcnt({vm})")
        if lgkm is not None:
            lgkm = min(lgkm, 15)
            if len(st.lgq) > lgkm:
                st.lgq = st.lgq[len(st.lgq) - lgkm:] if lgkm > 0 else []
                parts.append(f"lgkmcnt({lgkm})")
        if parts:
            self.lines.append("s_waitcnt " + " ".join(parts))
            st.pos += 1

    def wait_vm_id(self, i):
        st = self.st
        for k, e in enumerate(st.vmq):
            if e[0] == i:
                self.wait(vm=self._vm_after(k))
                return

    def wait_lg_id(self, i):
        st = self.st
        for k, e in enumerate(st.lgq):
            if e[0] == i:
                if any(x[2] for x in st.lgq):
                    self.wait(lgkm=0)
                else:
                    self.wait(lgkm=len(st.lgq) - k - 1)
                return

    def drain(self):
        self.wait(vm=0, lgkm=0)
        self.nop(16)

    def __call__(self, text):
        for ln in text.strip().split("\n"):
            ln = ln.split(";")[0].strip()
            if ln:
                r = self.emit(ln)
        return r

    def emit(self, ln):
        st = self.st
        parts = ln.split(None, 1)
        op = parts[0]
        rest = parts[1] if len(parts) > 1 else ""
        base = op
        for suf in ("_e32", "_e64", "_dpp", "_sdwa"):
            if base.endswith(suf):
                base = base[: -len(suf)]
        ops = split_ops(rest)
        mods = ""
        if ops:
            lp = ops[-1].split(None, 1)
            ops[-1] = lp[0]
            mods = lp[1] if len(lp) > 1 else ""
        is_dpp = op.endswith("_dpp") or any(k in mods for k in ("row_shr", "row_shl", "row_ror", "quad_perm", "row_mirror", "row_half_mirror", "row_bcast", "row_newbcast"))
        is_sdwa = op.endswith("_sdwa") or "dst_sel" in mods
        R = lambda i: regs_of(ops[i]) if i < len(ops) else []
        rd, wr = [], []
        kind = None
        srcA = srcB = srcC = []
        if base.startswith("v_mfma"):
            kind = "mfma"
            wr = R(0); srcA = R(1); srcB = R(2); srcC = R(3)
            rd = srcA + srcB + srcC
            passes = 8 if "32x32x16" in base else 4
            assert ("32x32x16" in base) or ("16x16x32" in base) or ("16x16x16" in base)
        elif base.startswith("v_"):
            kind = "valu"
            if base.startswith("v_permlane") and "swap" in base:
                wr = R(0) + R(1); rd = R(0) + R(1)
            elif base.startswith("v_cmp"):
                wr = R(0); rd = [r for i in range(1, len(ops)) for r in R(i)]
            else:
                wr = R(0); rd = [r for i in range(1, len(ops)) for r in R(i)]
                if base in ("v_fmac_f32", "v_dot2c_f32_bf16", "v_pk_fmac_f16") or is_dpp or is_sdwa or base == "v_writelane_b32":
                    rd = rd + R(0)
                if base == "v_cndmask_b32" and len(ops) == 3:
                    rd = rd + regs_of("vcc")
        elif base.startswith("buffer_load") or base.startswith("global_load"):
            kind = "vmem"
            if " lds" in (" " + mods) or base.startswith("global_load_lds"):
                rd = [r for i in range(len(ops)) for r in R(i)] + [("m", 0)]
                kind = "dma"
            else:
                wr = R(0); rd = [r for i in range(1, len(ops)) for r in R(i)]
        elif base.startswith("buffer_store") or base.startswith("global_store") or base.startswith("global_atomic") or base.startswith("buffer_atomic"):
            kind = "vmem"
            rd = [r for i in range(len(ops)) for r in R(i)]
            if "atomic" in base and "sc0" in mods:
                wr = R(0)
        elif base.startswith("ds_read") or base.startswith("ds_bpermute") or base.startswith("ds_permute") or base.startswith("ds_swizzle"):
            kind = "ds"
            wr = R(0); rd = [r for i in range(1, len(ops)) for r in R(i)]
        elif base.startswith("ds_"):
            kind = "ds"
            rd = [r for i in range(len(ops)) for r in R(i)]
        elif base.startswith("s_load") or base.startswith("s_memtime") or base.startswith("s_memrealtime"):
            kind = "smem"
            wr = R(0); rd = [r for i in range(1, len(ops)) for r in R(i)]
        elif base.startswith("s_"):
            kind = "salu"
            if base.startswith(("s_cmp", "s_waitcnt", "s_barrier", "s_branch", "s_cbranch", "s_nop", "s_endpgm",
                                "s_setprio", "s_bitcmp", "s_sleep", "s_setpc")):
                rd = [r for i in range(len(ops)) for r in R(i)]
            else:
                wr = R(0); rd = [r for i in range(1, len(ops)) for r in R(i)]
                if "saveexec" in base:
                    wr = wr + regs_of("exec"); rd = rd + regs_of("exec")
        else:
            raise ValueError("unknown op " + ln)
        assert base != "s_waitcnt" and base != "s_nop", "use wait()/nop()"

        touched = set(rd) | set(wr)
        need_vm = None
        for k, e in enumerate(st.vmq):
            if e[1] & touched:
                need_vm = self._vm_after(k)
        need_lg = None
        for k, e in enumerate(st.lgq):
            if e[1] & touched:
                need_lg = len(st.lgq) - k - 1
        if need_lg is not None and any(x[2] for x in st.lgq):
            need_lg = 0
        if need_vm is not None or need_lg is not None:
            self.wait(vm=need_vm, lgkm=need_lg)

        need = st.pos
        def req(p, ws):
            nonlocal need
            need = max(need, p + ws + 1)
        is_valu = kind == "valu"
        is_trans = base in TRANS
        is_dot = base.startswith("v_dot")
        for r in rd:
            w = st.wr.get(r)
            if w:
                p, k, ex = w
                if k == "mfma":
                    ps, dregs = ex
                    if kind == "mfma":
                        if r in srcC and r not in srcA and r not in srcB:
                            if tuple(srcC) == dregs and ps == passes:
                                pass
                            else:
                                req(p, 10 if ps == 8 else 6)
                        else:
                            req(p, 12 if ps == 8 else 8)
                    else:
                        req(p, 12 if ps == 8 else 8)
                else:
                    if kind == "mfma":
                        req(p, 3 if k == "dot" else 2)
                    if k == "dot":
                        if not (is_dot and ex == base and r in R(3) and r not in R(1) and r not in R(2)):
                            req(p, 3)
                    if k == "trans" and not is_trans:
                        req(p, 1)
                    if k == "sdwa" and kind in ("valu", "mfma"):
                        req(p, 1)
                    if is_valu and (is_dpp or base.startswith("v_permlane")):
                        req(p, 2)
                    if base in ("v_readfirstlane_b32", "v_readlane_b32"):
                        req(p, 1)
            if r[0] == "s" and r in st.sgpr_valu:
                p = st.sgpr_valu[r]
                if kind in ("valu", "mfma"):
                    req(p, 4 if base in ("v_readlane_b32", "v_writelane_b32") else 2)
                elif kind in ("vmem", "dma"):
                    req(p, 5)
                elif kind in ("salu", "smem"):
                    req(p, 1)
            if r == ("m", 0) and kind == "dma":
                req(st.m0, 1)
        for r in wr:
            w = st.wr.get(r)
            if w:
                p, k, ex = w
                if k == "mfma":
                    ps, dregs = ex
                    if kind == "mfma":
                        if not (tuple(wr) == dregs and ps == passes):
                            req(p, 10 if ps == 8 else 6)
                    else:
                        req(p, 12 if ps == 8 else 8)
                elif k == "dot" and not (is_dot and ex == base):
                    req(p, 3)
            if r in st.mfma_c and kind != "mfma":
                p, ps = st.mfma_c[r]
                req(p, 7 if ps == 8 else 3)
            if r in st.st_data:
                req(st.st_data[r], 2)
        if need > st.pos:
            self.nop(need - st.pos)

        self.lines.append(ln)
        p = st.pos
        st.pos += 1
        ident = None
        if kind == "mfma":
            for r in wr:
                st.wr[r] = (p, "mfma", (passes, tuple(wr)))
            for r in srcC:
                st.mfma_c[r] = (p, passes)
        elif kind == "valu":
            k = "trans" if is_trans else "dot" if is_dot else "sdwa" if (is_sdwa or "op_sel" in mods) else "valu"
            for r in wr:
                if r[0] in ("v", "a"):
                    st.wr[r] = (p, k, base)
                elif r[0] == "s":
                    st.sgpr_valu[r] = p
        elif kind in ("vmem", "dma"):
            st.nid += 1
            ident = st.nid
            st.vmq.append((ident, set(wr), self.maybe))
            for r in wr:
                st.wr.pop(r, None)
            if ("store" in base) and ("x3" in base or "x4" in base):
                d = R(0) if base.startswith("buffer") else R(1)
                for r in d:
                    st.st_data[r] = p
        elif kind == "ds":
            st.nid += 1
            ident = st.nid
            st.lgq.append((ident, set(wr), False))
            for r in wr:
                st.wr.pop(r, None)
        elif kind == "smem":
            st.nid += 1
            ident = st.nid
            st.lgq.append((ident, set(wr), True))
        elif kind == "salu":
            for r in wr:
                if r == ("m", 0):
                    st.m0 = p
                st.sgpr_valu.pop(r, None)
        return ident

    tl = None
    def tl_begin(self, kidx, wave_sgpr):
        if self.tl is None:
            return
        self.tl = (kidx, wave_sgpr)
        self("s_memrealtime s[96:97]")

    def end(self):
        if self.tl:
            from layout import WS_TL
            kidx, ws_ = self.tl
            self("s_load_dwordx2 s[92:93], s[0:1], 96")
            self("s_memrealtime s[98:99]")
            self("s_mov_b64 exec, 1")
            self("s_lshl_b32 s94, s2, 6")
            if ws_ is not None:
                self(f"s_lshl_b32 s95, s{ws_}, 3")
                self("s_add_u32 s94, s94, s95")
            self(f"s_add_u32 s94, s94, 0x{WS_TL + kidx * 16384:x}")
            self.wait(vm=0, lgkm=0)
            self.raw("s_waitcnt vmcnt(0) lgkmcnt(0)")
            self.nop(16)
            self("v_mov_b32 v0, s94")
            self("v_mov_b32 v2, s96")
            self("v_mov_b32 v3, s98")
            self("global_store_dwordx2 v0, v[2:3], s[92:93]")
        self("s_endpgm")

    def text(self):
        return "\n".join(self.lines) + "\n"


def v(i, n=1):
    return f"v{i}" if n == 1 else f"v[{i}:{i+n-1}]"


def a(i, n=1):
    return f"a{i}" if n == 1 else f"a[{i}:{i+n-1}]"


def s(i, n=1):
    return f"s{i}" if n == 1 else f"s[{i}:{i+n-1}]"


def r(i, n=1):
    return v(i, n) if i < 256 else a(i - 256, n)


def kdesc(name, nv, acc, ns=102):
    return f""".p2align 6
.amdhsa_kernel {name}
  .amdhsa_next_free_vgpr {nv}
  .amdhsa_next_free_sgpr {ns}
  .amdhsa_accum_offset {acc}
  .amdhsa_group_segment_fixed_size 0
  .amdhsa_kernarg_size 104
  .amdhsa_user_sgpr_count 2
  .amdhsa_user_sgpr_kernarg_segment_ptr 1
  .amdhsa_system_sgpr_workgroup_id_x 1
.end_amdhsa_kernel
"""


def kentry(name):
    return f".globl {name}\n.p2align 8\n.type {name},@function\n{name}:"
```

```python
from asmlib import *
from layout import *
from k1 import bf16r, ln_stats
import os

K2_RED = 0
K2_QST = 8192
K2_OB = 49152
OSTR = 1824
K2_FLG = K2_OB + 8 * OSTR
K2_ST = K2_FLG + 16
K2_LDS = K2_ST + 512
K2_MX = K2_RED

GROUPS = [(0, 4), (1, 5), (2, 6, 3)]


def gen_k2(A, name, dbg_time=False):
    A.reset()
    A.raw(kentry(name))
    L16, LANE, L16B = 0, 1, 2
    T0, T1, T2, T3, T4 = 3, 4, 5, 6, 7
    MISC4 = 8
    S = [12, 28]
    P = 44
    KV = 52
    O0 = 100
    WOFV = 116
    AO = 256 + 0
    AQ = 256 + 48
    WOFA = 256 + 80
    ASP = 256 + 248
    PZ = S[1]

    def blk(u):
        return (u + 1) & 3

    def Oreg(b):
        return O0 if b == 0 else AO + 16 * (b - 1)

    early = [(sl, jn) for g in GROUPS[:2] for jn in g for sl in range(14)] + [(sl, jn) for sl in range(7) for jn in GROUPS[2]]
    late = [(sl, jn) for sl in range(7, 14) for jn in GROUPS[2]]
    womap = {}
    for f, k in enumerate(early):
        womap[k] = WOFV + 4 * f if f < 35 else WOFA + 4 * (f - 35)
    late_regs = [(0, ASP), (0, ASP + 4)]
    late_regs += [(60, AQ + 8 * 1), (60, AQ + 8 * 1 + 4), (61, AQ + 8 * 2), (61, AQ + 8 * 2 + 4), (62, AQ + 8 * 3), (62, AQ + 8 * 3 + 4)]
    late_regs += [(63, AQ), (63, AQ + 4)]
    late_regs += [(100 + b, AO + 16 * (b - 1) + 4 * i) for b in (1, 2, 3) for i in range(4)]
    for k, (_, rg) in zip(late, late_regs):
        womap[k] = rg

    sW, sG, sROT, sKV, sWO = 36, 37, 38, 39, 40
    sQ = 41
    sPASS = 45
    sT0, sT1, sT2, sT3 = 46, 47, 48, 49
    sROW = 50
    sR14 = 51
    sKV0, sWO0 = 53, 54
    sE = 55
    sEW = 56

    nst = [0]
    def stamp():
        if dbg_time:
            A(f"s_memtime s[{60+2*nst[0]}:{61+2*nst[0]}]")
            A.wait(lgkm=0)
            nst[0] += 1
    def stamp_store():
        if dbg_time:
            stamp()
            A("s_mov_b64 exec, 1")
            A(f"s_lshl_b32 s{sT0}, s2, 2")
            A(f"s_add_u32 s{sT0}, s{sT0}, s{sW}")
            A(f"s_lshl_b32 s{sT0}, s{sT0}, 7")
            A(f"s_add_u32 s{sT0}, s{sT0}, 0x{WS_DBG:x}")
            A(f"v_mov_b32 v{T0}, 0")
            for i in range(nst[0]):
                A(f"v_mov_b32 v{T1}, s{60+2*i}")
                A(f"buffer_store_dword v{T1}, v{T0}, s[12:15], s{sT0} offen offset:{4*i}")
    A("s_cmp_ge_u32 s2, 256")
    A(f"s_cbranch_scc1 L_{name}_end")
    A.tl_begin(1, sW)
    stamp()
    A("s_load_dwordx2 s[10:11], s[0:1], 96")
    A("s_load_dwordx2 s[4:5], s[0:1], 0")
    A("s_load_dwordx2 s[6:7], s[0:1], 48")
    A("s_load_dwordx2 s[8:9], s[0:1], 80")
    A(f"v_and_b32 v{LANE}, 63, v0")
    A(f"v_lshrrev_b32 v{T0}, 6, v0")
    A(f"v_readfirstlane_b32 s{sW}, v{T0}")
    A(f"v_lshlrev_b32 v{L16}, 4, v{LANE}")
    A(f"v_add_u32 v{L16B}, 4096, v{L16}")
    A(f"s_and_b32 s{sT0}, s2, 7")
    A(f"s_lshl_b32 s{sT0}, s{sT0}, 3")
    A(f"s_bfe_u32 s{sT1}, s2, 0x30003")
    A(f"s_or_b32 s{sT0}, s{sT0}, s{sT1}")
    A(f"s_and_b32 s{sT1}, s2, 0xc0")
    A(f"s_or_b32 s{sG}, s{sT0}, s{sT1}")
    A(f"s_mul_i32 s{sROW}, s{sG}, 7168")
    A(f"s_lshr_b32 s{sROT}, s2, 3")
    A(f"s_and_b32 s{sKV0}, s{sROT}, 15")
    A(f"s_lshl_b32 s{sKV0}, s{sKV0}, 12")
    A(f"s_mov_b32 s14, 0x{WS_SIZE:x}\ns_mov_b32 s15, 0x20000")
    A("s_mov_b32 s18, 65536\ns_mov_b32 s19, 0x20000")
    A(f"s_lshl_b32 s{sT0}, s{sW}, 16")
    A(f"s_add_u32 s{sT0}, s{sT0}, 0x{WS_KV:x}")
    A(f"s_mul_i32 s{sT2}, s{sW}, 1792")
    A(f"s_add_u32 s{sQ}, s{sT2}, s{sROW}")
    if WS_Q:
        A(f"s_add_u32 s{sQ}, s{sQ}, 0x{WS_Q:x}")
    A(f"s_add_u32 s{sQ+1}, s{sT2}, {K2_QST}")
    A(f"s_mov_b32 s{sPASS}, 0")
    for i in range(8):
        A(f"v_mov_b32 v{PZ+i}, 0")
    A(f"v_bfe_u32 v{T0}, v{LANE}, 4, 1")
    A(f"v_mul_u32_u24 v{T0}, 896, v{T0}")
    A(f"v_and_b32 v{T1}, 15, v{LANE}")
    A(f"v_mul_u32_u24 v{T1}, 56, v{T1}")
    A(f"v_lshrrev_b32 v{T2}, 5, v{LANE}")
    A(f"v_lshlrev_b32 v{T2}, 3, v{T2}")
    A(f"v_add3_u32 v{T4}, v{T0}, v{T1}, v{T2}")
    stamp()
    A("s_mov_b32 s12, s10\ns_mov_b32 s13, s11")
    A(f"s_add_u32 s16, s10, s{sT0}\ns_addc_u32 s17, s11, 0")

    def q_dma():
        A(f"s_mov_b32 m0, s{sQ+1}")
        A(f"buffer_load_dwordx4 v{L16}, s[12:15], s{sQ} offen lds")
        return A(f"buffer_load_dwordx4 v{L16}, s[12:15], s{sQ} offen offset:1024 lds")

    QA = P

    def q_addr():
        for b in range(4):
            A(f"s_add_u32 s{sT0}, s{sW}, {b}")
            A(f"s_and_b32 s{sT0}, s{sT0}, 3")
            A(f"s_mul_i32 s{sT0}, s{sT0}, 1792")
            A(f"s_add_u32 s{sT0}, s{sT0}, {K2_QST}")
            A(f"v_add_u32 v{QA+b}, s{sT0}, v{T4}")

    def q_read(qid):
        A.wait_vm_id(qid)
        A("s_barrier")
        for b in (1, 2, 3, 0):
            for mf in range(2):
                for pc in range(2):
                    if mf == 1 and pc == 1:
                        A("s_mov_b32 exec_hi, 0")
                    A(f"ds_read_b64 {r(AQ+8*b+4*mf+2*pc,2)}, v{QA+b} offset:{32*mf+16*pc}")
                    if mf == 1 and pc == 1:
                        A("s_mov_b32 exec_hi, -1")

    def kv_loads(i, part):
        base = KV + 16 * (i % 3) + 8 * part
        return [f"buffer_load_dwordx4 {v(base+4*m,4)}, v{L16}, s[16:19], s{sKV} offen offset:{2048*part+1024*m}" for m in range(2)]

    def kv_adv():
        return f"s_add_u32 s{sKV}, s{sKV}, 4096\ns_and_b32 s{sKV}, s{sKV}, 0xffff"

    A.label(f"L_{name}_start")
    A(f"s_mov_b32 s{sKV}, s{sKV0}")
    qid = q_dma()
    stamp()
    for x in kv_loads(0, 0) + kv_loads(0, 1):
        A(x)
    for i in (1, 2):
        A(kv_adv())
        for x in kv_loads(i, 0) + kv_loads(i, 1):
            A(x)
    stamp()
    for b in range(4):
        A(f"v_accvgpr_write_b32 {r(AQ+8*b+6)}, v{PZ+2*b}")
        A(f"v_accvgpr_write_b32 {r(AQ+8*b+7)}, v{PZ+2*b+1}")
    q_addr()
    A(f"s_cmp_ge_u32 s{sROT}, 28")
    A(f"s_cselect_b32 s{sT0}, 28, 0")
    A(f"s_sub_u32 s{sR14}, s{sROT}, s{sT0}")
    A(f"s_cmp_ge_u32 s{sR14}, 14")
    A(f"s_cselect_b32 s{sT0}, 14, 0")
    A(f"s_sub_u32 s{sR14}, s{sR14}, s{sT0}")
    A(f"s_mul_i32 s{sWO0}, s{sR14}, 7168")
    A(f"s_mov_b32 s{sWO}, s{sWO0}")
    A("s_mov_b32 s22, 100352\ns_mov_b32 s23, 0x20000")
    A("s_mov_b32 s26, 1835008\ns_mov_b32 s27, 0x20000")
    A("s_mov_b32 s30, 1835008\ns_mov_b32 s31, 0x20000")
    A("s_mov_b32 s34, 896\ns_mov_b32 s35, 0x20000")
    A(f"s_mul_i32 s{sT1}, s{sW}, 100352")
    A(f"s_add_u32 s{sT1}, s{sT1}, 0x{WS_WOF:x}")
    A(f"s_add_u32 s20, s10, s{sT1}\ns_addc_u32 s21, s11, 0")
    A("s_mov_b32 s24, s4\ns_mov_b32 s25, s5")
    A("s_mov_b32 s28, s8\ns_mov_b32 s29, s9")
    A("s_mov_b32 s32, s6\ns_mov_b32 s33, s7")
    XR = KV + 16
    WR = KV + 24
    EV = T3
    EW = T2
    A(f"v_and_b32 v{T0}, 7, v{LANE}")
    A(f"v_mul_u32_u24 v{T0}, 896, v{T0}")
    A(f"v_bfe_u32 v{T1}, v{LANE}, 3, 1")
    A(f"v_lshlrev_b32 v{T1}, 7, v{T1}")
    A(f"v_lshrrev_b32 v{EW}, 4, v{LANE}")
    A(f"v_lshl_add_u32 v{EW}, v{EW}, 3, v{T1}")
    A(f"v_add_u32 v{EV}, v{EW}, v{T0}")
    A(f"s_mul_i32 s{sEW}, s{sW}, 224")
    A(f"s_add_u32 s{sE}, s{sEW}, s{sROW}")
    for b in (1, 2, 3, 0):
        A(f"s_add_u32 s{sT0}, s{sW}, {b}")
        A(f"s_and_b32 s{sT0}, s{sT0}, 3")
        A(f"s_mul_i32 s{sT0}, s{sT0}, 12288")
        A(f"s_add_u32 s{sT0}, s{sT0}, {K2_RED + ((b-1)*4096 if b else 0)}")
        A(f"v_add_u32 v{MISC4+(b-1)%4}, s{sT0}, v{L16}")
    stamp()
    q_read(qid)

    q_hi = []
    for i in range(13):
        t = i + 3
        k0, k1_ = kv_loads(t, 0)
        v0_, v1_ = kv_loads(t, 1)
        q_hi.append((4 * (4 * i + 3), kv_adv() + "\n" + k0))
        q_hi.append((4 * (4 * i + 3), k1_))
        q_hi.append((4 * (4 * i + 4) + 2, v0_))
        q_hi.append((4 * (4 * i + 4) + 2, v1_))
    for k in range(4):
        q_hi.append((4 * 57, f"buffer_load_dwordx2 {v(XR+2*k,2)}, v{EV}, s[24:27], s{sE} offen offset:{32*k}"))
        q_hi.append((4 * 57, f"buffer_load_dwordx2 {v(WR+2*k,2)}, v{EW}, s[32:35], s{sEW} offen offset:{32*k}"))
    wo_adv = f"s_add_u32 s{sWO}, s{sWO}, 7168\ns_cmp_ge_u32 s{sWO}, 100352\ns_cselect_b32 s{sWO}, 0, s{sWO}\n"

    def wo_load(sl, jn):
        vo = L16 if jn < 4 else L16B
        return f"buffer_load_dwordx4 {r(womap[(sl,jn)],4)}, v{vo}, s[20:23], s{sWO} offen offset:{1024*(jn&3)}"
    q_wo = []
    for sl in range(14):
        first = True
        for jn in (0, 4, 1, 5, 2, 6, 3):
            if (sl, jn) in late:
                continue
            q_wo.append((wo_adv if (first and sl > 0) else "") + wo_load(sl, jn))
            first = False
    q_late = []
    for i, (sl, jn) in enumerate(late):
        pre = ""
        if i == 0:
            pre = (f"s_add_u32 s{sWO}, s{sWO0}, {7*7168}\ns_cmp_ge_u32 s{sWO}, 100352\n"
                   f"s_cselect_b32 s{sT0}, 100352, 0\ns_sub_u32 s{sWO}, s{sWO}, s{sT0}\n")
        elif jn == GROUPS[2][0]:
            pre = wo_adv
        q_late.append((late_regs[i][0], pre + wo_load(sl, jn)))
    q_red = []
    for b in (1, 2, 3):
        for rg in range(4):
            q_red.append((4 * (60 + b) + 3, b, f"ds_write_b128 v{MISC4+b-1}, {r(Oreg(b)+4*rg,4)} offset:{1024*rg}"))

    def QK(u, mf):
        i, b = u >> 2, blk(u)
        kb = KV + 16 * (i % 3) + 4 * mf
        sd = S[u & 1]
        c = "0" if mf == 0 else v(sd, 16)
        A(f"v_mfma_f32_32x32x16_bf16 {v(sd,16)}, {v(kb,4)}, {r(AQ+8*b+4*mf,4)}, {c}")

    def PV(u, m):
        i, b = u >> 2, blk(u)
        vb = KV + 16 * (i % 3) + 8 + 4 * m
        o = Oreg(b)
        c = "0" if (i == 0 and m == 0) else r(o, 16)
        A(f"v_mfma_f32_32x32x16_bf16 {r(o,16)}, {v(vb,4)}, {v(P+4*m,4)}, {c}")

    QK(0, 0)
    QK(0, 1)
    stamp()
    nwo = len(q_wo)
    WO_END = 4 * 56
    wo_done = 0
    red_done = set()

    def pick(slot):
        nonlocal wo_done
        if q_red and q_red[0][0] <= slot:
            o = []
            for _ in range(2):
                if q_red and q_red[0][0] <= slot:
                    _, b, x = q_red.pop(0)
                    o.append(x)
                    if not any(e[1] == b for e in q_red):
                        red_done.add(100 + b)
            return o
        if q_hi and q_hi[0][0] <= slot:
            return q_hi.pop(0)[1].split("\n")
        if wo_done < nwo:
            target = min(nwo, (nwo * (slot + 1) + WO_END - 1) // WO_END)
            if wo_done < target:
                wo_done += 1
                return q_wo[wo_done - 1].split("\n")
            return []
        if q_late and (q_late[0][0] <= (slot >> 2)):
            return q_late.pop(0)[1].split("\n")
        return []

    pend = []

    def extra(slot):
        for x in pend:
            A(x)
        pend.clear()

    def pre_extra(slot):
        o = pick(slot)
        while o and o[0].startswith("s_"):
            A(o.pop(0))
        pend.extend(o)

    pre_extra(0)

    for u in range(64):
        sd = S[u & 1]
        if u in (16, 48):
            stamp()
        for g in range(4):
            did = True
            if g == 0:
                if u + 1 < 64:
                    QK(u + 1, 0)
                else:
                    did = False
            elif g == 1:
                if u > 0:
                    PV(u - 1, 1)
                else:
                    did = False
            elif g == 2:
                if u + 1 < 64:
                    QK(u + 1, 1)
                else:
                    did = False
            else:
                PV(u, 0)
            if did or u == 63:
                extra(4 * u + g)
            for e in range(4):
                rr = sd + 4 * g + e
                A(f"v_exp_f32 v{rr}, v{rr}")
                if e == 1 and not pend:
                    pre_extra(4 * u + g + 1)
            for c in range(2):
                A(f"v_cvt_pk_bf16_f32 v{P+2*g+c}, v{sd+4*g+2*c}, v{sd+4*g+2*c+1}")
    assert not q_hi and wo_done == nwo, (len(q_hi), wo_done, nwo)
    PV(63, 1)
    extra(1000)
    while q_red:
        pre_extra(1000)
        extra(1000)
    stamp()

    A.wait(lgkm=0)
    A("s_barrier")
    stamp()
    RB = [S[0], S[1], KV]
    for sl in range(3):
        for rg in range(4):
            A(f"ds_read_b128 {v(RB[sl]+4*rg,4)}, v{MISC4+3} offset:{4096*sl+1024*rg}")
    A(f"v_bfe_u32 v{T0}, v{LANE}, 4, 1")
    A(f"v_mul_u32_u24 v{T0}, {OSTR-896}, v{T0}")
    A(f"s_mul_i32 s{sT0}, s{sW}, {2*OSTR}")
    A(f"s_add_u32 s{sT0}, s{sT0}, {K2_OB}")
    A(f"v_add3_u32 v{T0}, v{T0}, v{T4}, s{sT0}")
    for sl in range(3):
        order = (12, 14, 0, 2, 4, 6, 8, 10) if sl == 2 else range(0, 16, 2)
        for i in order:
            A(f"v_pk_add_f32 {v(O0+i,2)}, {v(O0+i,2)}, {v(RB[sl]+i,2)}")
            if sl == 2 and i == 14:
                A(f"v_mov_b32 v{MISC4}, v{O0+12}")
                A(f"v_mov_b32 v{MISC4+1}, v{O0+12}")
            if sl == 2 and i == 2:
                A(f"v_permlane32_swap_b32 v{MISC4}, v{MISC4+1}")
            if sl == 2 and i == 6:
                A(f"v_rcp_f32 v{MISC4+2}, v{MISC4+1}")
    stamp()
    A(f"v_cmp_le_f32 vcc, 0x21800000, v{MISC4+1}")
    A(f"s_mov_b64 s[{sT2}:{sT3}], vcc")
    A(f"v_cmp_ge_f32 vcc, 0x5d800000, v{MISC4+1}")
    for a_ in range(4):
        for i in (4 * a_, 4 * a_ + 2):
            A(f"v_pk_mul_f32 {v(O0+i,2)}, {v(O0+i,2)}, {v(MISC4+2,2)} op_sel_hi:[1,0]")
        for i in (4 * a_, 4 * a_ + 2):
            A(f"v_cvt_pk_bf16_f32 v{P+i//2}, v{O0+i}, v{O0+i+1}")
        if a_ == 3:
            A("s_mov_b32 exec_hi, 0")
        A(f"ds_write_b64 v{T0}, {v(P+2*a_,2)} offset:{16*a_}")
        A(f"ds_write_b64 v{T0}, {v(P+2*a_,2)} offset:{16*a_+896}")
        if a_ == 3:
            A("s_mov_b32 exec_hi, -1")
        if a_ == 0:
            A(f"s_and_b64 s[{sT2}:{sT3}], s[{sT2}:{sT3}], vcc")
            A(f"s_not_b64 s[{sT2}:{sT3}], s[{sT2}:{sT3}]")
            A(f"s_cselect_b32 s{sT2}, 1, 0")
            A(f"s_lshl_b32 s{sT0}, s{sW}, 2")
            A(f"s_add_u32 s{sT0}, s{sT0}, {K2_FLG}")
            A(f"v_mov_b32 v{T1}, s{sT0}")
            A(f"v_mov_b32 v{MISC4}, s{sT2}")
            A(f"ds_write_b32 v{T1}, v{MISC4}")
    A(f"v_and_b32 v{T0}, 7, v{LANE}")
    A(f"v_mul_u32_u24 v{T0}, {OSTR}, v{T0}")
    A(f"v_lshrrev_b32 v{T1}, 4, v{LANE}")
    A(f"v_lshl_add_u32 v{T0}, v{T1}, 4, v{T0}")
    A(f"s_lshl_b32 s{sT0}, s{sR14}, 6")
    A(f"s_add_u32 s{sT0}, s{sT0}, {K2_OB}")
    A(f"v_add_u32 v{T0}, s{sT0}, v{T0}")
    A(f"v_mov_b32 v{T1}, {K2_FLG}")
    A.wait(lgkm=0)
    A("s_barrier")
    stamp()
    BF = [S[0] + 4 * i for i in range(8)] + [KV + 4 * i for i in range(4)] + [KV + 32, KV + 36]
    FL = KV + 40
    A(f"ds_read_b128 {v(BF[0],4)}, v{T0}")
    A(f"ds_read_b128 {v(FL,4)}, v{T1}")
    for i in range(1, 14):
        A(f"ds_read_b128 {v(BF[i],4)}, v{T0} offset:{64*i}")
    ACC = {0: O0, 4: O0 + 4, 1: O0 + 8, 5: O0 + 12, 2: P, 6: P + 4, 3: MISC4}
    A("s_mov_b32 vcc_lo, 0xff00ff00")
    A("s_mov_b32 vcc_hi, 0xff00ff00")

    def mf(sl, jn):
        c = "0" if sl == 0 else v(ACC[jn], 4)
        A(f"v_mfma_f32_16x16x32_bf16 {v(ACC[jn],4)}, {r(womap[(sl,jn)],4)}, {v(BF[sl],4)}, {c}")

    mf(0, 0)
    mf(0, 4)
    A(f"v_or3_b32 v{FL}, v{FL}, v{FL+1}, v{FL+2}")
    A(f"v_or_b32 v{FL}, v{FL}, v{FL+3}")
    mf(1, 0)
    mf(1, 4)
    A(f"v_readfirstlane_b32 s{sT0}, v{FL}")
    A(f"s_andn2_b32 s{sT0}, s{sT0}, s{sPASS}")
    A(f"s_cbranch_scc1 L_{name}_fallback")
    st_fb = A.fork()
    for sl in range(2, 14):
        o = q_late.pop(0)[1].split("\n") if q_late else []
        while o and o[0].startswith("s_"):
            A(o.pop(0))
        mf(sl, 0)
        for x in o:
            A(x)
        mf(sl, 4)
    assert not q_late
    TMP = WOFV
    X32 = TMP
    W32 = TMP + 16
    SP = TMP + 32
    HP = TMP + 40
    HNP = TMP + 48
    OP = TMP + 56
    G = TMP + 64
    HN32 = TMP + 80
    EW2 = TMP + 96

    def unpack(k):
        o = []
        for src, dst in ((XR, X32), (WR, W32)):
            for i in (2 * k, 2 * k + 1):
                o.append(f"v_lshlrev_b32 v{dst+2*i}, 16, v{src+i}")
                o.append(f"v_and_b32 v{dst+2*i+1}, 0xffff0000, v{src+i}")
        if k == 3:
            for e in range(4):
                o.append(f"v_cndmask_b32 v{W32+12+e}, v{W32+12+e}, 0, vcc" if False else f"v_cndmask_b32_e64 v{W32+12+e}, v{W32+12+e}, 0, vcc")
        for e in range(4):
            w_ = W32 + 4 * k + e
            if k == 0 and e < 2:
                o.append(f"v_add_f32 v{SP+6+e}, v{w_}, v{w_+2}")
            elif k > 0:
                o.append(f"v_add_f32 v{SP+6+(e&1)}, v{SP+6+(e&1)}, v{w_}")
        return o

    def post(k):
        o = []
        h = ACC[k]
        for e in range(4):
            o.append(f"v_cndmask_b32 v{h+e}, v{h+e}, v{ACC[k+4]+e}, vcc")
        for e in range(4):
            o.append(f"v_add_f32 v{h+e}, v{h+e}, v{X32+4*k+e}")
        for e in (0, 2):
            o.append(f"v_cvt_pk_bf16_f32 v{HP+2*k+e//2}, v{h+e}, v{h+e+1}")
        for e in range(4):
            j = e & 1
            if k == 0 and e < 2:
                o.append(f"v_mul_f32 v{SP+2+j}, v{h+e}, v{h+e}")
                o.append(f"v_mul_f32 v{SP+4+j}, v{h+e}, v{W32+e}")
                o.append(f"v_add_f32 v{SP+j}, v{h+e}, v{h+e+2}")
            else:
                if k > 0:
                    o.append(f"v_add_f32 v{SP+j}, v{SP+j}, v{h+e}")
                o.append(f"v_fmac_f32 v{SP+2+j}, v{h+e}, v{h+e}")
                o.append(f"v_fmac_f32 v{SP+4+j}, v{h+e}, v{W32+4*k+e}")
        return o

    def run_group(g, fill, per):
        fill = list(fill)
        for sl in range(14):
            for jn in GROUPS[g]:
                mf(sl, jn)
                for _ in range(per):
                    if fill:
                        A(fill.pop(0))
        for x in fill:
            A(x)

    addr = [f"v_and_b32 v{T0}, 7, v{LANE}",
            f"v_lshlrev_b32 v{T0}, 4, v{T0}",
            f"v_add_u32 v{T0}, {K2_ST}, v{T0}",
            f"v_lshrrev_b32 v{T1}, 4, v{LANE}",
            f"v_lshl_add_u32 v{T1}, v{T1}, 2, v{T0}",
            f"s_lshl_b32 s{sT0}, s{sW}, 7\nv_add_u32 v{T1}, s{sT0}, v{T1}",
            f"v_add_u32 v{EW2}, 1792, v{EW}"]
    run_group(1, unpack(0) + unpack(1) + post(0), 2)
    run_group(2, unpack(2) + post(1) + unpack(3) + addr, 2)
    stamp()
    h2, h3 = ACC[2], ACC[3]
    for e in range(4):
        A(f"v_cndmask_b32 v{h2+e}, v{h2+e}, v{ACC[6]+e}, vcc")
    for k in (2, 3):
        h = ACC[k]
        if k == 3:
            A("s_mov_b32 exec_lo, 0x00ff00ff")
            A("s_mov_b32 exec_hi, 0x00ff00ff")
        for e in (0, 2):
            A(f"v_pk_add_f32 {v(h+e,2)}, {v(h+e,2)}, {v(X32+4*k+e,2)}")
        for e in (0, 2):
            A(f"v_pk_add_f32 {v(SP,2)}, {v(SP,2)}, {v(h+e,2)}")
            A(f"v_pk_fma_f32 {v(SP+2,2)}, {v(h+e,2)}, {v(h+e,2)}, {v(SP+2,2)}")
            A(f"v_pk_fma_f32 {v(SP+4,2)}, {v(h+e,2)}, {v(W32+4*k+e,2)}, {v(SP+4,2)}")
    A("s_mov_b64 exec, -1")
    for i in range(4):
        A(f"v_add_f32 v{SP+2*i}, v{SP+2*i}, v{SP+2*i+1}")
    A(f"v_permlane16_swap_b32 v{SP}, v{SP+2}")
    A(f"v_permlane16_swap_b32 v{SP+4}, v{SP+6}")
    A(f"v_add_f32 v{SP}, v{SP}, v{SP+2}")
    A(f"v_add_f32 v{SP+4}, v{SP+4}, v{SP+6}")
    A(f"v_cvt_pk_bf16_f32 v{HP+4}, v{h2}, v{h2+1}")
    A(f"v_cvt_pk_bf16_f32 v{HP+5}, v{h2+2}, v{h2+3}")
    A(f"v_permlane32_swap_b32 v{SP}, v{SP+4}")
    A(f"v_add_f32 v{SP}, v{SP}, v{SP+4}")
    A(f"v_cvt_pk_bf16_f32 v{HP+6}, v{h3}, v{h3+1}")
    A(f"v_cvt_pk_bf16_f32 v{HP+7}, v{h3+2}, v{h3+3}")
    A(f"v_add_f32_dpp v{SP}, v{SP}, v{SP} row_ror:8 row_mask:0xf bank_mask:0xf")
    A(f"ds_write_b32 v{T1}, v{SP}")
    A.wait(lgkm=0)
    A("s_barrier")
    stamp()
    for w_ in range(4):
        A(f"ds_read_b128 {v(G+4*w_,4)}, v{T0} offset:{128*w_}")
    A(f"s_mul_i32 s{sT1}, s{sG}, 3584")
    A(f"s_add_u32 s{sT1}, s{sT1}, s{sEW}")
    A(f"s_add_u32 s{sT1}, s{sT1}, 0x{WS_SELR:x}")
    A(f"s_lshl_b32 s{sT0}, s{sG}, 4")
    A(f"v_and_b32 v{T1}, 7, v{LANE}")
    A(f"v_or_b32 v{T1}, s{sT0}, v{T1}")
    A(f"s_lshl_b32 s{sT0}, s{sG}, 3")
    A(f"s_add_u32 s{sT0}, s{sT0}, 0x{WS_KEY:x}")
    for e in (0, 2):
        A(f"v_pk_add_f32 {v(G+e,2)}, {v(G+e,2)}, {v(G+4+e,2)}")
        A(f"v_pk_add_f32 {v(G+8+e,2)}, {v(G+8+e,2)}, {v(G+12+e,2)}")
    for e in (0, 2):
        A(f"v_pk_add_f32 {v(G+e,2)}, {v(G+e,2)}, {v(G+8+e,2)}")
    M_, RS, NM, TT = G + 4, G + 7, G + 6, G + 5
    ln_stats(A, f"v{G}", f"v{G+1}", f"v{M_}", f"v{RS}", f"v{TT}")
    A(f"v_mul_f32_e64 v{NM}, -v{M_}, v{RS}")
    stamp()
    KEY, a1, a2, b1, c_ = G + 8, G + 10, G + 11, G + 12, G + 13
    kc = [f"v_mul_f32 v{G+3}, v{G+3}, v{NM}",
          f"v_fma_f32 v{KEY}, v{G+2}, v{RS}, v{G+3}",
          f"v_ashrrev_i32 v{G+3}, 31, v{KEY}",
          f"v_or_b32 v{G+3}, 0x80000000, v{G+3}",
          f"v_xor_b32 v{KEY}, v{KEY}, v{G+3}",
          f"v_and_b32 v{KEY}, 0xfffff000, v{KEY}",
          f"v_or_b32 v{KEY}, v{KEY}, v{T1}",
          None, None,
          f"v_mov_b32_dpp v{b1}, v{KEY} quad_perm:[1,0,3,2] row_mask:0xf bank_mask:0xf",
          f"v_min_u32 v{a2}, v{KEY}, v{b1}",
          f"v_max_u32 v{a1}, v{KEY}, v{b1}"]
    for dpp in ("quad_perm:[2,3,0,1]", "row_half_mirror"):
        kc += [None, None,
               f"v_mov_b32_dpp v{b1}, v{a1} {dpp} row_mask:0xf bank_mask:0xf",
               f"v_max_u32_dpp v{c_}, v{a2}, v{a2} {dpp} row_mask:0xf bank_mask:0xf",
               f"v_med3_u32 v{a2}, v{a1}, v{b1}, v{c_}",
               f"v_max_u32 v{a1}, v{a1}, v{b1}"]
    kc += [f"v_cmp_eq_u32 vcc, v{KEY}, v{a1}",
           f"v_or_b32 v{a1}, 8, v{a1}",
           f"v_cndmask_b32 v{EW2}, v{EW}, v{EW2}, vcc",
           f"v_cmp_ge_u32 vcc, v{KEY}, v{a2}"]

    def kstep():
        if kc:
            x = kc.pop(0)
            if x:
                A(x)
    for k in range(4):
        h = ACC[k]
        hn = HN32 + 4 * k
        for e in (0, 2):
            A(f"v_pk_fma_f32 {v(hn+e,2)}, {v(h+e,2)}, {v(NM,2)}, {v(NM,2)} op_sel:[0,1,0] op_sel_hi:[1,1,0]")
            kstep()
        for e in (0, 2):
            A(f"v_pk_add_f32 {v(h+e,2)}, {v(h+e,2)}, {v(hn+e,2)}")
            kstep()
        for e in (0, 2):
            A(f"v_cvt_pk_bf16_f32 v{OP+2*k+e//2}, v{h+e}, v{h+e+1}")
            kstep()
        if k == 3:
            A("s_mov_b32 exec_lo, 0x00ff00ff")
            A("s_mov_b32 exec_hi, 0x00ff00ff")
        A(f"buffer_store_dwordx2 {v(OP+2*k,2)}, v{EV}, s[28:31], s{sE} offen offset:{32*k}")
        if k == 3:
            A("s_mov_b64 exec, -1")
    for k in range(4):
        for e in (0, 2):
            A(f"v_cvt_pk_bf16_f32 v{HNP+2*k+e//2}, v{HN32+4*k+e}, v{HN32+4*k+e+1}")
            kstep()
    while kc:
        kstep()
    stamp()
    A("s_mov_b64 exec, vcc")
    for k in range(4):
        if k == 3:
            A("s_and_b32 exec_lo, exec_lo, 0x00ff00ff")
            A("s_and_b32 exec_hi, exec_hi, 0x00ff00ff")
        A(f"buffer_store_dwordx2 {v(HNP+2*k,2)}, v{EW2}, s[12:15], s{sT1} offen offset:{32*k}")
        A(f"buffer_store_dwordx2 {v(HP+2*k,2)}, v{EW2}, s[12:15], s{sT1} offen offset:{32*k+896}")
    stamp()
    A("s_mov_b64 exec, 1")
    A(f"s_cmp_lg_u32 s{sW}, 3")
    A(f"s_cbranch_scc1 L_{name}_fin")
    tok = A.cond_begin()
    A(f"buffer_store_dwordx2 {v(a1,2)}, off, s[12:15], s{sT0}")
    A.cond_end(tok)
    A.label(f"L_{name}_fin")
    stamp_store()
    A.end()

    A.restore(st_fb)
    A.label(f"L_{name}_fallback")
    A.drain()
    A(f"v_mov_b32 v{T0}, 0")
    for b in range(4):
        A(f"v_accvgpr_write_b32 {r(AQ+8*b+6)}, v{T0}")
        A(f"v_accvgpr_write_b32 {r(AQ+8*b+7)}, v{T0}")
    qid = q_dma()
    q_addr()
    q_read(qid)
    A.drain()
    MXR = P
    for b in range(4):
        A(f"v_mov_b32 v{MXR+b}, 0xff800000")
    A(f"s_mov_b32 s{sKV}, 0")
    A.drain()
    A.label(f"L_{name}_fbloop")
    for x in kv_loads(0, 0):
        A(x)
    for b in range(4):
        sd = S[b & 1]
        A(f"v_mfma_f32_32x32x16_bf16 {v(sd,16)}, {v(KV,4)}, {r(AQ+8*b,4)}, 0")
        A(f"v_mfma_f32_32x32x16_bf16 {v(sd,16)}, {v(KV+4,4)}, {r(AQ+8*b+4,4)}, {v(sd,16)}")
        for i in range(0, 16, 2):
            A(f"v_max3_f32 v{MXR+b}, v{MXR+b}, v{sd+i}, v{sd+i+1}")
    A(f"s_add_u32 s{sKV}, s{sKV}, 4096")
    A(f"s_cmp_lt_u32 s{sKV}, 65536")
    A.drain()
    A(f"s_cbranch_scc1 L_{name}_fbloop")
    for b in range(4):
        A(f"v_mov_b32 v{MXR+4+b}, v{MXR+b}")
    for b in range(4):
        A(f"v_permlane32_swap_b32 v{MXR+b}, v{MXR+4+b}")
    for b in range(4):
        A(f"v_max_f32 v{MXR+b}, v{MXR+b}, v{MXR+4+b}")
    A(f"v_and_b32 v{T0}, 31, v{LANE}")
    A(f"v_lshlrev_b32 v{T0}, 2, v{T0}")
    A(f"v_add_u32 v{T0}, {K2_MX}, v{T0}")
    for b in range(4):
        A(f"s_add_u32 s{sT0}, s{sW}, {b}")
        A(f"s_and_b32 s{sT0}, s{sT0}, 3")
        A(f"s_lshl_b32 s{sT0}, s{sT0}, 7")
        A(f"v_add_u32 v{MXR+4+b}, s{sT0}, v{T0}")
        A(f"s_lshl_b32 s{sT1}, s{sW}, 9")
        A(f"v_add_u32 v{T1}, s{sT1}, v{MXR+4+b}")
        A(f"ds_write_b32 v{T1}, v{MXR+b}")
    A.wait(lgkm=0)
    A("s_barrier")
    for b in range(4):
        for w_ in range(4):
            A(f"ds_read_b32 v{S[0]+4*b+w_}, v{MXR+4+b} offset:{512*w_}")
    for b in range(4):
        m = S[0] + 4 * b
        A(f"v_max3_f32 v{m}, v{m}, v{m+1}, v{m+2}")
        A(f"v_max_f32 v{m}, v{m}, v{m+3}")
        A(f"v_sub_f32 v{m}, 0, v{m}")
        bf16r(A, f"v{m+1}", f"v{m}")
        A(f"v_sub_f32 v{m}, v{m}, v{m+1}")
        bf16r(A, f"v{m+2}", f"v{m}")
        A(f"v_sub_f32 v{m}, v{m}, v{m+2}")
        A(f"v_cvt_pk_bf16_f32 v{PZ+2*b}, v{m+1}, v{m+2}")
        A(f"v_cvt_pk_bf16_f32 v{PZ+2*b+1}, v{m}, 0")
    A(f"s_mov_b32 s{sPASS}, -1")
    A.drain()
    A("s_barrier")
    A(f"s_branch L_{name}_start")
    A.label(f"L_{name}_end")
    A("s_endpgm")
    return kdesc(name, 512, 256)
```

```python
from asmlib import *
from layout import *
from k1 import bf16r

K3_WGS = 112
K3_GU = 0
K3_DN = 28672
K3_EX = 45056
K3_LDS = 49152
PT = 14336 + 256
LOG2E = 0x3fb8aa3b


def top2_reduce(A, a1, a2, b1, c):
    for dpp in ("quad_perm:[1,0,3,2]", "quad_perm:[2,3,0,1]", "row_half_mirror", "row_mirror"):
        A(f"v_mov_b32_dpp v{b1}, v{a1} {dpp} row_mask:0xf bank_mask:0xf")
        A(f"v_max_u32_dpp v{c}, v{a2}, v{a2} {dpp} row_mask:0xf bank_mask:0xf")
        A(f"v_med3_u32 v{a2}, v{a1}, v{b1}, v{c}")
        A(f"v_max_u32 v{a1}, v{a1}, v{b1}")
    for sw in ("v_permlane16_swap_b32", "v_permlane32_swap_b32"):
        A(f"v_mov_b32 v{b1}, v{a1}")
        A(f"v_mov_b32 v{c}, v{a2}")
        A(f"{sw} v{a1}, v{b1}")
        A(f"{sw} v{a2}, v{c}")
        A(f"v_max_u32 v{c}, v{a2}, v{c}")
        A(f"v_med3_u32 v{a2}, v{a1}, v{b1}, v{c}")
        A(f"v_max_u32 v{a1}, v{a1}, v{b1}")


def gen_k3(A, name):
    A.reset()
    A.raw(kentry(name))
    LANE, T0, T1, T2, T3 = 1, 2, 3, 4, 5
    GO, DO, GA, DA = 6, 7, 8, 9
    KY = 12
    HB = 20
    WF = 48
    DF = 76
    ACC = 92
    EX = 96
    Y = 112
    XH = 140
    sW, sSL = 36, 37
    sT0, sT1, sT2, sT3 = 38, 39, 40, 41
    sG, sM = 42, 43
    A(f"s_cmp_ge_u32 s2, {K3_WGS}")
    A(f"s_cbranch_scc1 L_{name}_end")
    A.tl_begin(2, sW)
    A("s_load_dwordx4 s[4:7], s[0:1], 56")
    A("s_load_dwordx2 s[8:9], s[0:1], 72")
    A("s_load_dwordx2 s[10:11], s[0:1], 96")
    A(f"v_and_b32 v{LANE}, 63, v0")
    A(f"v_lshrrev_b32 v{T0}, 6, v0")
    A(f"v_readfirstlane_b32 s{sW}, v{T0}")
    A(f"s_and_b32 s{sT0}, s2, 7")
    A(f"s_mul_i32 s{sT0}, s{sT0}, 14")
    A(f"s_lshr_b32 s{sT1}, s2, 3")
    A(f"s_add_u32 s{sSL}, s{sT0}, s{sT1}")
    A(f"v_lshrrev_b32 v{T0}, 1, v{LANE}")
    A(f"v_mul_u32_u24 v{T0}, 3584, v{T0}")
    A(f"v_and_b32 v{T1}, 1, v{LANE}")
    A(f"v_lshl_add_u32 v{GO}, v{T1}, 4, v{T0}")
    A(f"v_mul_u32_u24 v{T0}, 37, v{LANE}")
    A(f"v_lshrrev_b32 v{T0}, 9, v{T0}")
    A(f"v_mul_u32_u24 v{T1}, 672, v{T0}")
    A(f"v_lshl_add_u32 v{DO}, v{LANE}, 4, v{T1}")
    A(f"v_lshlrev_b32 v{T3}, 4, v{LANE}")
    A(f"s_mov_b32 s14, 0x{WS_SIZE:x}\ns_mov_b32 s15, 0x20000")
    A("s_mov_b32 s18, 1605632\ns_mov_b32 s19, 0x20000")
    A("s_mov_b32 s22, 1605632\ns_mov_b32 s23, 0x20000")
    A(f"s_lshr_b32 s{sT0}, s{sW}, 1")
    A(f"s_mul_i32 s{sG}, s{sT0}, {224*3584}")
    A(f"s_lshl_b32 s{sT1}, s{sSL}, 5")
    A(f"s_add_u32 s{sG}, s{sG}, s{sT1}")
    A(f"s_mul_i32 s{sM}, s{sW}, 7168")
    A(f"s_mov_b32 s{sT2}, 0x{WS_KEY:x}")
    A(f"s_bitcmp1_b32 s{sW}, 0")
    A("s_cselect_b32 s16, s6, s4")
    A("s_cselect_b32 s17, s7, s5")
    A("s_mov_b32 s12, s10\ns_mov_b32 s13, s11")
    A("s_mov_b32 s20, s8\ns_mov_b32 s21, s9")
    A(f"buffer_load_dwordx4 {v(KY,4)}, v{T3}, s[12:15], s{sT2} offen")
    A(f"buffer_load_dwordx4 {v(KY+4,4)}, v{T3}, s[12:15], s{sT2} offen offset:1024")
    gid = []
    for st in range(7):
        A(f"s_add_u32 m0, s{sM}, {K3_GU + 1024*st}")
        gid.append(A(f"buffer_load_dwordx4 v{GO}, s[16:19], s{sG} offen lds"))
        if st < 6:
            A(f"s_add_u32 s{sG}, s{sG}, {32*3584}")
    A(f"s_mul_i32 s{sG}, s{sSL}, 14336")
    A(f"s_mul_i32 s{sT0}, s{sW}, 224")
    A(f"s_add_u32 s{sG}, s{sG}, s{sT0}")
    A(f"s_lshl_b32 s{sT1}, s{sW}, 12")
    A("s_mov_b32 exec_hi, 0x00ffffff")
    for g in range(4):
        A(f"s_add_u32 m0, s{sT1}, {K3_DN + 1024*g - (3584*g if False else 0)}")
        did = A(f"buffer_load_dwordx4 v{DO}, s[20:23], s{sG} offen lds")
        if g < 3:
            A(f"s_add_u32 s{sG}, s{sG}, 3584")
    A("s_mov_b32 exec_hi, -1")
    A(f"v_lshrrev_b32 v{T0}, 4, v{LANE}")
    A(f"v_bfe_u32 v{T1}, v{LANE}, 2, 2")
    A(f"v_and_b32 v{T2}, 3, v{LANE}")
    A(f"v_lshl_add_u32 v{GA}, v{T0}, 3, v{T1}")
    A(f"v_lshlrev_b32 v{GA}, 5, v{GA}")
    A(f"v_lshl_add_u32 v{GA}, v{T2}, 3, v{GA}")
    A(f"v_add_u32 v{GA}, s{sM}, v{GA}")
    A(f"v_mul_u32_u24 v{DA}, 224, v{T1}")
    A(f"v_lshl_add_u32 v{DA}, v{T0}, 10, v{DA}")
    A(f"v_lshl_add_u32 v{DA}, v{T2}, 3, v{DA}")
    A(f"v_add_u32 v{DA}, s{sT1}, v{DA}")
    a1, a2, b1, c = KY, KY + 1, T1, T2
    for i in (2, 4, 6):
        A(f"v_max_u32 v{c}, v{a2}, v{KY+i+1}")
        A(f"v_med3_u32 v{a2}, v{a1}, v{KY+i}, v{c}")
        A(f"v_max_u32 v{a1}, v{a1}, v{KY+i}")
    top2_reduce(A, a1, a2, b1, c)
    A("s_mov_b32 vcc_lo, 0xaaaaaaaa")
    A("s_mov_b32 vcc_hi, 0xaaaaaaaa")
    A(f"v_cndmask_b32 v{KY+2}, v{a1}, v{a2}, vcc")
    A(f"v_bfe_u32 v{KY+3}, v{KY+2}, 3, 9")
    A(f"v_mul_u32_u24 v{KY+4}, 1792, v{KY+3}")
    A(f"v_lshl_add_u32 v{KY+5}, v{T0}, 4, v{KY+4}")
    A(f"s_lshr_b32 s{sT0}, s{sW}, 1")
    A(f"s_mul_i32 s{sT0}, s{sT0}, 448")
    A(f"s_add_u32 s{sT0}, s{sT0}, 0x{WS_SELR:x}")
    for st in range(7):
        A(f"buffer_load_dwordx4 {v(HB+4*st,4)}, v{KY+5}, s[12:15], s{sT0} offen offset:{64*st}")
    A(f"s_cmp_lt_u32 s{sSL}, 28")
    A(f"s_cselect_b32 s{sT3}, 1, 0")
    A(f"s_cmp_eq_u32 s{sW}, 0")
    A(f"s_cselect_b32 s{sT3}, s{sT3}, 0")
    A(f"s_cmp_eq_u32 s{sT3}, 0")
    A(f"s_cbranch_scc1 L_{name}_nox")
    tok = A.cond_begin()
    A(f"v_lshl_add_u32 v{KY+6}, v{T0}, 3, v{KY+4}")
    A(f"s_lshl_b32 s{sT0}, s{sSL}, 5")
    A(f"s_add_u32 s{sT2}, s{sT0}, 0x{WS_SELR:x}")
    A(f"buffer_load_dwordx2 {v(XH,2)}, v{KY+6}, s[12:15], s{sT2} offen")
    A(f"buffer_load_dwordx2 {v(XH+2,2)}, v{KY+6}, s[12:15], s{sT2} offen offset:896")
    A.cond_end(tok)
    A.label(f"L_{name}_nox")
    for st in range(7):
        A.wait_vm_id(gid[st])
        A(f"ds_read_b64_tr_b16 {v(WF+4*st,2)}, v{GA} offset:{K3_GU+1024*st}")
        A(f"ds_read_b64_tr_b16 {v(WF+4*st+2,2)}, v{GA} offset:{K3_GU+1024*st+128}")
    A.wait_vm_id(did)
    for t in range(7):
        A(f"ds_read_b64_tr_b16 {v(DF+2*t,2)}, v{DA} offset:{K3_DN+32*t}")
    A(f"v_and_b32 v{T1}, 1, v{LANE}")
    A(f"v_lshlrev_b32 v{T1}, 6, v{T1}")
    A(f"v_lshl_add_u32 v{T1}, v{T0}, 4, v{T1}")
    A(f"s_mul_i32 s{sG}, s{sW}, {7*PT}")
    A(f"s_lshl_b32 s{sT0}, s{sSL}, 7")
    A(f"s_add_u32 s{sG}, s{sG}, s{sT0}")
    A(f"s_add_u32 s{sG}, s{sG}, 0x{WS_PART:x}")
    A(f"s_lshl_b32 s{sT0}, s{sW}, 10")
    A(f"s_add_u32 s{sT0}, s{sT0}, {K3_EX}")
    A(f"v_add_u32 v{T2}, s{sT0}, v{T3}")
    for st in range(7):
        cc = "0" if st == 0 else v(ACC, 4)
        A(f"v_mfma_f32_16x16x32_bf16 {v(ACC,4)}, {v(WF+4*st,4)}, {v(HB+4*st,4)}, {cc}")
    A(f"ds_write_b128 v{T2}, {v(ACC,4)}")
    A.wait(lgkm=0)
    A("s_barrier")
    for w_ in range(4):
        A(f"ds_read_b128 {v(EX+4*w_,4)}, v{T3} offset:{K3_EX+1024*w_}")
    G_, U_ = EX, EX + 4
    for e in (0, 2):
        A(f"v_pk_add_f32 {v(G_+e,2)}, {v(G_+e,2)}, {v(EX+8+e,2)}")
        A(f"v_pk_add_f32 {v(U_+e,2)}, {v(U_+e,2)}, {v(EX+12+e,2)}")
    E_ = EX + 8
    for i in range(4):
        bf16r(A, f"v{G_+i}", f"v{G_+i}")
    for i in range(4):
        A(f"v_mul_f32 v{E_+i}, 0xbfb8aa3b, v{G_+i}")
    for i in range(4):
        A(f"v_exp_f32 v{E_+i}, v{E_+i}")
    for i in range(4):
        bf16r(A, f"v{U_+i}", f"v{U_+i}")
    for i in range(4):
        A(f"v_add_f32 v{E_+i}, 1.0, v{E_+i}")
    for i in range(4):
        A(f"v_rcp_f32 v{E_+i}, v{E_+i}")
    for i in range(4):
        A(f"v_mul_f32 v{G_+i}, v{G_+i}, v{E_+i}")
    for i in range(4):
        bf16r(A, f"v{G_+i}", f"v{G_+i}")
    for i in range(4):
        A(f"v_mul_f32 v{G_+i}, v{G_+i}, v{U_+i}")
    A(f"v_cvt_pk_bf16_f32 v{E_}, v{G_}, v{G_+1}")
    A(f"v_cvt_pk_bf16_f32 v{E_+1}, v{G_+2}, v{G_+3}")
    for t in range(7):
        A(f"v_mfma_f32_16x16x16_bf16 {v(Y+4*t,4)}, {v(DF+2*t,2)}, {v(E_,2)}, 0")
    A("s_mov_b32 exec_lo, 0x00030003")
    A("s_mov_b32 exec_hi, 0x00030003")
    for t in range(7):
        A(f"buffer_store_dwordx4 {v(Y+4*t,4)}, v{T1}, s[12:15], s{sG} offen")
        if t < 6:
            A(f"s_add_u32 s{sG}, s{sG}, {PT}")
    A(f"s_cmp_eq_u32 s{sT3}, 0")
    A(f"s_cbranch_scc1 L_{name}_fin")
    A(f"s_mul_i32 s{sG}, s{sSL}, {PT}")
    A(f"s_add_u32 s{sG}, s{sG}, 0x{WS_PART+14336:x}")
    for j in range(2):
        A(f"v_lshlrev_b32 v{EX+4*j}, 16, v{XH+2*j}")
        A(f"v_and_b32 v{EX+4*j+1}, 0xffff0000, v{XH+2*j}")
        A(f"v_lshlrev_b32 v{EX+4*j+2}, 16, v{XH+2*j+1}")
        A(f"v_and_b32 v{EX+4*j+3}, 0xffff0000, v{XH+2*j+1}")
        A(f"buffer_store_dwordx4 {v(EX+4*j,4)}, v{T1}, s[12:15], s{sG} offen offset:{128*j}")
    A("s_mov_b32 exec_lo, 3")
    A("s_mov_b32 exec_hi, 0")
    A(f"v_lshlrev_b32 v{T2}, 2, v{LANE}")
    A(f"s_lshl_b32 s{sT0}, s{sSL}, 3")
    A(f"s_add_u32 s{sT0}, s{sT0}, 0x{WS_SEL:x}")
    A(f"buffer_store_dword v{KY+2}, v{T2}, s[12:15], s{sT0} offen")
    A.label(f"L_{name}_fin")
    A.end()
    A.label(f"L_{name}_end")
    A("s_endpgm")
    return kdesc(name, 144, 144)


def gen_k4(A, name):
    A.reset()
    A.raw(kentry(name))
    T0, T1, T2, T3 = 1, 2, 3, 4
    KEY = 5
    HN, H = 8, 12
    PB = 16
    A("s_cmp_ge_u32 s2, 28")
    A(f"s_cbranch_scc1 L_{name}_end")
    A.tl_begin(3, None)
    A("s_load_dwordx2 s[8:9], s[0:1], 80")
    A("s_load_dwordx2 s[10:11], s[0:1], 96")
    A(f"v_lshlrev_b32 v{T0}, 4, v0")
    A(f"v_and_b32 v{T1}, 0x70, v{T0}")
    A(f"v_bfe_u32 v{T2}, v0, 2, 1")
    A(f"v_lshlrev_b32 v{T2}, 2, v{T2}")
    A(f"s_mov_b32 s14, 0x{WS_SIZE:x}\ns_mov_b32 s15, 0x20000")
    A("s_mov_b32 s18, 1835008\ns_mov_b32 s19, 0x20000")
    A(f"s_mul_i32 s20, s2, {PT}")
    A(f"s_add_u32 s20, s20, 0x{WS_PART:x}")
    A(f"s_add_u32 s21, s20, 4096")
    A(f"s_add_u32 s22, s20, 8192")
    A(f"s_add_u32 s23, s20, 12288")
    A(f"s_lshl_b32 s24, s2, 3")
    A(f"s_add_u32 s24, s24, 0x{WS_SEL:x}")
    A("s_mov_b32 s12, s10\ns_mov_b32 s13, s11")
    A("s_mov_b32 s16, s8\ns_mov_b32 s17, s9")
    A(f"buffer_load_dword v{KEY}, v{T2}, s[12:15], s24 offen")
    for i in range(14):
        A(f"buffer_load_dwordx4 {v(PB+4*i,4)}, v{T0}, s[12:15], s{20+i//4} offen offset:{1024*(i%4)}")
    A(f"buffer_load_dwordx4 {v(HN,4)}, v{T1}, s[12:15], s23 offen offset:2048")
    A(f"buffer_load_dwordx4 {v(H,4)}, v{T1}, s[12:15], s23 offen offset:{2048+128}")
    A(f"v_bfe_u32 v{T3}, v{KEY}, 4, 8")
    A(f"v_and_b32 v{T2}, 7, v{KEY}")
    A(f"v_lshl_add_u32 v{T3}, v{T3}, 3, v{T2}")
    A(f"v_and_b32 v{KEY}, 0xfffff000, v{KEY}")
    A(f"v_ashrrev_i32 v{T2}, 31, v{KEY}")
    A(f"v_not_b32 v{T2}, v{T2}")
    A(f"v_or_b32 v{T2}, 0x80000000, v{T2}")
    A(f"v_xor_b32 v{KEY}, v{KEY}, v{T2}")
    bf16r(A, f"v{KEY}", f"v{KEY}")
    A(f"v_mul_f32 v{KEY}, 0xbfb8aa3b, v{KEY}")
    A(f"v_exp_f32 v{KEY}, v{KEY}")
    A(f"v_mul_u32_u24 v{T3}, 896, v{T3}")
    A(f"v_add_f32 v{KEY}, 1.0, v{KEY}")
    A(f"v_rcp_f32 v{KEY}, v{KEY}")
    A(f"v_and_b32 v{T2}, 3, v0")
    A(f"v_lshl_add_u32 v{T3}, v{T2}, 3, v{T3}")
    bf16r(A, f"v{KEY}", f"v{KEY}")
    A(f"s_lshl_b32 s24, s2, 5")
    n = 14
    idx = list(range(14))
    while len(idx) > 1:
        nxt = []
        for j in range(0, len(idx) - 1, 2):
            x, y = PB + 4 * idx[j], PB + 4 * idx[j + 1]
            A(f"v_pk_add_f32 {v(x,2)}, {v(x,2)}, {v(y,2)}")
            A(f"v_pk_add_f32 {v(x+2,2)}, {v(x+2,2)}, {v(y+2,2)}")
            nxt.append(idx[j])
        if len(idx) & 1:
            nxt.append(idx[-1])
        idx = nxt
    R = PB
    for i in range(4):
        A(f"v_add_f32_dpp v{R+i}, v{R+i}, v{R+i} row_ror:8 row_mask:0xf bank_mask:0xf")
    for sw in ("v_permlane16_swap_b32", "v_permlane32_swap_b32"):
        for i in range(4):
            A(f"v_mov_b32 v{R+4+i}, v{R+i}")
        for i in range(4):
            A(f"{sw} v{R+i}, v{R+4+i}")
        for i in range(4):
            A(f"v_add_f32 v{R+i}, v{R+i}, v{R+4+i}")
    for i in range(4):
        bf16r(A, f"v{R+i}", f"v{R+i}")
    for i in range(4):
        A(f"v_mul_f32 v{R+i}, v{R+i}, v{KEY}")
    for i in range(4):
        bf16r(A, f"v{R+i}", f"v{R+i}")
    for i in range(4):
        A(f"v_add_f32 v{R+i}, v{R+i}, v{HN+i}")
    for i in range(4):
        bf16r(A, f"v{R+i}", f"v{R+i}")
    for i in range(4):
        A(f"v_add_f32 v{R+i}, v{R+i}, v{H+i}")
    A(f"v_cvt_pk_bf16_f32 v{R+4}, v{R}, v{R+1}")
    A(f"v_cvt_pk_bf16_f32 v{R+5}, v{R+2}, v{R+3}")
    A("s_mov_b32 exec_lo, 0xff")
    A("s_mov_b32 exec_hi, 0")
    A(f"buffer_store_dwordx2 {v(R+4,2)}, v{T3}, s[16:19], s24 offen")
    A.end()
    A.label(f"L_{name}_end")
    A("s_endpgm")
    return kdesc(name, 72, 72)
```

```python
WS_Q = 0x000000
WS_KV = 0x1C0000
WS_WOF = 0x200000
WS_SELR = 0x270000
WS_KEY = 0x350000
WS_SEL = 0x351000
WS_PART = 0x360000
WS_DBG = 0x3D0000
WS_TL = 0x3F0000
WS_SIZE = 0x400000
NAME = "sequential_preLN__grouped_kv_mqa__moe_arch_mod__prompt"
```
